```python
import torch

def _softmax(x, axis=-1):
    return torch.softmax(x, dim=axis)
def _gelu(x):
    return torch.nn.functional.gelu(x, approximate="tanh")
def _silu(x):
    return torch.nn.functional.silu(x)
def _sigmoid(x):
    return torch.sigmoid(x)
def _layernorm(x, axis=-1, eps=1e-5):
    m = x.mean(dim=axis, keepdim=True)
    v = x.var(dim=axis, keepdim=True, unbiased=False)
    return (x - m) / torch.sqrt(v + eps)
def _scatter_add(tgt, idx, src, axis=0):
    return tgt.clone().index_add_(axis, idx, src)
def _segment_sum(src, seg, n):
    out = torch.zeros((n,) + src.shape[1:], dtype=src.dtype)
    return out.index_add_(0, seg, src)
def _pad(x, pw):
    flat = tuple(v for pair in reversed(pw) for v in pair)
    return torch.nn.functional.pad(x, flat)

kernel_name = 'parallel_sum__linear_attn_block__dense_activation_relu__prompt'

def setup_inputs():

    _w = (lambda a: (lambda t: t.to(torch.bfloat16) if t.is_floating_point() else t)(torch.as_tensor(a)))
    def _A_setup():
        B, S, D = 1, 2048, 640
        return {
            "x": _w((lambda *s: torch.randn(*s, dtype=torch.bfloat16) * 0.05)(B, S, D)),
            "wqkv": _w((lambda *s: torch.randn(*s, dtype=torch.bfloat16) * 0.2)(D, 3 * D)),
            "wo": _w((lambda *s: torch.randn(*s, dtype=torch.bfloat16) * 0.2)(D, D)),
        }
    _A_in = _A_setup()

    def _B_setup():
        B, S, D, Dff = 1, 2048, 640, 1728
        return {
            "x": _w((lambda *s: torch.randn(*s, dtype=torch.bfloat16) * 0.05)(B, S, D)),
            "w1": _w((lambda *s: torch.randn(*s, dtype=torch.bfloat16) * 0.05)(D, Dff)),
            "w2": _w((lambda *s: torch.randn(*s, dtype=torch.bfloat16) * 0.05)(Dff, D)),
        }
    _B_in = _B_setup()

    return {
        "A_x": _A_in["x"],
        "A_wqkv": _A_in["wqkv"],
        "A_wo": _A_in["wo"],
        "B_x": _B_in["x"],
        "B_w1": _B_in["w1"],
        "B_w2": _B_in["w2"],
    }

def reference(A_x, A_wqkv, A_wo, B_x, B_w1, B_w2):
    def _A_ref(x, wqkv, wo):
        B, S, D = x.shape
        H = 32; Dh = D // H
        qkv = (lambda x, *d: x.permute(*d))((x @ wqkv).reshape(B, S, 3, H, Dh), 2, 0, 3, 1, 4)
        q, k, v = qkv[0], qkv[1], qkv[2]
        phi = lambda t: torch.where(t > 0, t + 1, torch.exp(t)) + 1e-6
        pq, pk = phi(q), phi(k)
        kv = torch.einsum("bhsd,bhse->bhde", pk, v)
        z = torch.einsum("bhsd->bhd", pk)
        num = torch.einsum("bhqd,bhde->bhqe", pq, kv)
        den = torch.einsum("bhqd,bhd->bhq", pq, z)[..., None] + 1e-6
        o = num / den
        return (lambda x, *d: x.permute(*d))(o, 0, 2, 1, 3).reshape(B, S, D) @ wo

    def _B_ref(x, w1, w2):
        h = torch.einsum("bsd,df->bsf", x, w1)
        zero = torch.zeros_like(h)
        h = torch.maximum(h, zero)
        return torch.einsum("bsf,fd->bsd", h, w2)

    x = A_x
    xn = _layernorm(x, axis=-1)
    return x + _A_ref(xn, A_wqkv, A_wo) + _B_ref(xn, B_w1, B_w2)
```

```python
import re

class Op:
    __slots__ = ("text", "kind", "tag", "vm_tags", "lg_tags", "note")
    def __init__(self, text, kind="", tag=None, vm_tags=None, lg_tags=None, note=None):
        self.text = text; self.kind = kind; self.tag = tag
        self.vm_tags = vm_tags; self.lg_tags = lg_tags; self.note = note
    def __repr__(self): return f"Op({self.text!r},{self.kind},{self.tag})"

def classify(text):
    m = text.split()[0]
    if m.endswith(":"): return "label"
    if m.startswith("v_mfma") or m.startswith("v_smfmac"): return "mfma"
    if m.startswith("ds_"): return "ds"
    if m.startswith("buffer_wbl2") or m.startswith("buffer_inv"): return "vmem"
    if m.startswith("buffer_") or m.startswith("global_"): return "vmem"
    if m.startswith("s_load") or m.startswith("s_memtime") or m.startswith("s_memrealtime"): return "smem"
    if m.startswith("s_waitcnt"): return "waitraw"
    if m.startswith("s_cbranch") or m.startswith("s_branch") or m.startswith("s_endpgm") or m.startswith("s_setpc"): return "branch"
    if m.startswith("s_"): return "salu"
    if m.startswith("v_"): return "valu"
    if m.startswith("."): return "dir"
    raise ValueError("cannot classify " + text)

class Stream:
    def __init__(self): self.ops = []
    def __call__(self, text, tag=None, note=None):
        for line in text.split("\n"):
            line = line.strip()
            if not line or line.startswith(";"): continue
            self.ops.append(Op(line, classify(line), tag, note=note))
        return self
    def wait(self, vm=None, lg=None):
        if isinstance(vm, str): vm = [vm]
        if isinstance(lg, str): lg = [lg]
        self.ops.append(Op("<wait>", "wait", vm_tags=vm, lg_tags=lg))
        return self
    def waitall(self, vm=True, lg=True):
        parts = []
        if vm: parts.append("vmcnt(0)")
        if lg: parts.append("lgkmcnt(0)")
        self.ops.append(Op("s_waitcnt " + " ".join(parts), "waitraw"))
        return self
    def extend(self, other):
        self.ops.extend(other.ops if isinstance(other, Stream) else other)
        return self
    def label(self, name):
        self.ops.append(Op(name + ":", "label")); return self

def resolve_waits(ops):
    out = []
    vmq = []
    lgq = []
    for op in ops:
        if op.note == "cond":
            out.append(op)
        elif op.kind == "vmem":
            vmq.append(op.tag); out.append(op)
        elif op.kind == "ds":
            lgq.append(op.tag); out.append(op)
        elif op.kind == "smem":
            lgq.append("<smem>"); out.append(op)
        elif op.kind == "waitraw":
            m = re.search(r"vmcnt\((\d+)\)", op.text)
            if m:
                n = int(m.group(1)); vmq = vmq[len(vmq) - n:] if n < len(vmq) else vmq
                if n == 0: vmq = []
            m = re.search(r"lgkmcnt\((\d+)\)", op.text)
            if m:
                n = int(m.group(1)); lgq = lgq[len(lgq) - n:] if n < len(lgq) else lgq
                if n == 0: lgq = []
            out.append(op)
        elif op.kind == "wait":
            parts = []
            if op.vm_tags is not None:
                idx = [i for i, t in enumerate(vmq) if t in op.vm_tags]
                if idx:
                    n = len(vmq) - 1 - idx[-1]
                    n = min(n, 63)
                    parts.append(f"vmcnt({n})")
                    vmq = vmq[len(vmq) - n:] if n > 0 else []
            if op.lg_tags is not None:
                idx = [i for i, t in enumerate(lgq) if t in op.lg_tags]
                if idx:
                    n = len(lgq) - 1 - idx[-1]
                    if "<smem>" in lgq: n = 0
                    n = min(n, 15)
                    parts.append(f"lgkmcnt({n})")
                    lgq = lgq[len(lgq) - n:] if n > 0 else []
            if parts:
                out.append(Op("s_waitcnt " + " ".join(parts), "waitraw"))
        else:
            out.append(op)
    return out

_REG = re.compile(r"\b([vas])(\d+)\b|\b([vas])\[(\d+):(\d+)\]")
def regs_of(tok):
    tok = tok.strip()
    neg = tok.lstrip("-").replace("abs(", "").replace(")", "").replace("|", "")
    m = re.fullmatch(r"([vas])(\d+)", neg)
    if m: return {(m.group(1), int(m.group(2)))}
    m = re.fullmatch(r"([vas])\[(\d+):(\d+)\]", neg)
    if m: return {(m.group(1), i) for i in range(int(m.group(2)), int(m.group(3)) + 1)}
    if neg == "vcc": return {("s", "vcc")}
    if neg == "exec": return {("s", "exec")}
    if neg == "m0": return {("s", "m0")}
    return set()

TRANS = ("v_exp_f32", "v_log_f32", "v_rcp_f32", "v_rsq_f32", "v_sqrt_f32", "v_sin_f32", "v_cos_f32")

def operands(text):
    parts = text.split(None, 1)
    if len(parts) < 2: return parts[0], []
    rest = parts[1]
    toks = []
    depth = 0; cur = ""
    for ch in rest:
        if ch == "[": depth += 1
        if ch == "]": depth -= 1
        if ch == "," and depth == 0:
            toks.append(cur.strip()); cur = ""
        else:
            cur += ch
    toks.append(cur.strip())
    last = toks[-1].split()
    mods = []
    if last:
        toks[-1] = last[0]; mods = last[1:]
    return parts[0], toks, mods

def rw_sets(op):
    r = operands(op.text)
    if len(r) == 2: return set(), set()
    mn, toks, mods = r
    R = set(); W = set()
    k = op.kind
    if k == "mfma":
        W |= regs_of(toks[0])
        for t in toks[1:4]: R |= regs_of(t)
    elif k == "valu":
        if mn.startswith("v_cmp"):
            W |= regs_of(toks[0])
            for t in toks[1:]: R |= regs_of(t)
        elif mn.startswith("v_permlane16_swap") or mn.startswith("v_permlane32_swap"):
            W |= regs_of(toks[0]) | regs_of(toks[1]); R |= W
        elif mn.startswith("v_swap"):
            W |= regs_of(toks[0]) | regs_of(toks[1]); R |= W
        else:
            W |= regs_of(toks[0])
            start = 1
            if "_co_" in mn:
                W |= regs_of(toks[1]); start = 2
            for t in toks[start:]: R |= regs_of(t)
            if mn.startswith("v_fmac") or mn.startswith("v_dot2c") or mn.startswith("v_writelane") or "_dpp" in mn or any("row_" in m or "quad_perm" in m for m in mods):
                R |= regs_of(toks[0])
            if mn.startswith("v_cndmask") and len(toks) == 3: R.add(("s", "vcc"))
    elif k == "ds":
        if mn.startswith("ds_read") or mn.startswith("ds_bpermute") or mn.startswith("ds_swizzle"):
            W |= regs_of(toks[0])
            for t in toks[1:]: R |= regs_of(t)
        else:
            for t in toks: R |= regs_of(t)
    elif k == "vmem":
        if mn.startswith("buffer_wbl2") or mn.startswith("buffer_inv"):
            pass
        elif mn.startswith("buffer_load"):
            if "lds" in mods:
                for t in toks: R |= regs_of(t)
                R.add(("s", "m0"))
            else:
                W |= regs_of(toks[0])
                for t in toks[1:]: R |= regs_of(t)
        elif mn.startswith("buffer_store") or mn.startswith("buffer_atomic"):
            for t in toks: R |= regs_of(t)
            if mn.startswith("buffer_atomic") and "sc0" in mods: W |= regs_of(toks[0])
        elif mn.startswith("global_load"):
            W |= regs_of(toks[0])
            for t in toks[1:]: R |= regs_of(t)
        else:
            for t in toks: R |= regs_of(t)
    elif k == "salu":
        if mn.startswith("s_cmp") or mn.startswith("s_bitcmp") or mn in ("s_barrier", "s_nop", "s_sleep", "s_setprio"):
            for t in toks: R |= regs_of(t)
        else:
            W |= regs_of(toks[0])
            for t in toks[1:]: R |= regs_of(t)
            if "saveexec" in mn:
                W.add(("s", "exec")); R.add(("s", "exec"))
    elif k == "smem":
        W |= regs_of(toks[0])
        for t in toks[1:]: R |= regs_of(t)
    return R, W

def nstates(op):
    if op.kind in ("label", "dir"): return 0
    if op.text.startswith("s_nop"):
        return int(op.text.split()[1]) + 1
    return 1

def mfma_passes(text):
    if "32x32x16" in text or "32x32x8" in text: return 8
    if "16x16x32" in text or "16x16x16" in text: return 4
    if "16x16x64" in text: return 8
    if "32x32x32" in text: return 16
    raise ValueError(text)

def is_v(rs): return {r for r in rs if r[0] in "va"}
def is_s(rs): return {r for r in rs if r[0] == "s"}

def required_distance(p, pR, pW, c, cR, cW):
    need = 0
    pm = p.text.split()[0]; cm = c.text.split()[0]
    if p.kind == "valu":
        vw = is_v(pW); sw = is_s(pW)
        if c.kind == "mfma" and vw & cR: need = max(need, 2)
        if c.kind == "valu":
            if (cm.startswith("v_readlane") or cm.startswith("v_readfirstlane")) and vw & cR: need = max(need, 1)
            if (cm.startswith("v_permlane")) and vw & cR: need = max(need, 2)
            if ("dpp" in c.text or "row_" in c.text or "quad_perm" in c.text) and vw & cR: need = max(need, 2)
            if sw & cR: need = max(need, 2)
            if (cm.startswith("v_readlane") or cm.startswith("v_writelane")) and sw & cR: need = max(need, 4)
            if pm.split("_e")[0] in TRANS and vw & cR and cm.split("_e")[0] not in TRANS: need = max(need, 1)
            if pm.split("_e")[0] in TRANS and vw & cR: need = max(need, 1)
            if "sdwa" in p.text and vw & (cR | cW): need = max(need, 1)
        if c.kind == "vmem" and sw & cR: need = max(need, 5)
        if c.kind == "salu" and sw & cR: need = max(need, 4)
        if c.kind == "branch" and ("vcc" in c.text) and ("s", "vcc") in sw: need = max(need, 5)
    elif p.kind == "mfma":
        n = mfma_passes(p.text)
        big = {4: 8, 8: 12, 16: 20}[n]
        ov = {4: 6, 8: 10, 16: 18}[n]
        if c.kind == "mfma":
            _, ct, _m = operands(c.text)
            cC = regs_of(ct[3]); cAB = regs_of(ct[1]) | regs_of(ct[2])
            if pW & cAB: need = max(need, big)
            if pW & cC:
                same = (pW == cC and pm == cm)
                if not same: need = max(need, ov)
            elif pW & cW and not (pW & cC):
                need = max(need, ov)
        elif c.kind in ("valu", "ds", "vmem"):
            if pW & (cR | cW): need = max(need, big)
            _, pt, _m = operands(p.text)
            pC = regs_of(pt[3])
            if c.kind == "valu" and pC & cW: need = max(need, {4: 3, 8: 7, 16: 15}[n])
    elif p.kind == "salu":
        if ("s", "m0") in pW and c.kind == "vmem" and ("s", "m0") in cR: need = max(need, 1)
        if ("s", "m0") in pW and c.kind == "ds" and ("addtid" in cm): need = max(need, 1)
    elif p.kind == "vmem":
        if ("store" in pm or "atomic" in pm) and ("x4" in pm or "x3" in pm):
            _, pt, _m = operands(p.text)
            data = regs_of(pt[0]) if pm.startswith("buffer") else regs_of(pt[1])
            if c.kind == "valu" and data & cW: need = max(need, 2)
            elif data & cW: need = max(need, 1)
    return need

MAXD = 20
def pad_hazards(ops, verbose=False):
    out = []
    info = []
    npad = 0
    for op in ops:
        if op.kind in ("label", "dir"):
            out.append(op); info.append((set(), set())); continue
        R, W = rw_sets(op)
        need_pad = 0
        dist = 0
        j = len(out) - 1
        while j >= 0 and dist < MAXD:
            p = out[j]
            if p.kind not in ("label", "dir"):
                pR, pW = info[j]
                n = required_distance(p, pR, pW, op, R, W)
                if n > dist: need_pad = max(need_pad, n - dist)
                dist += nstates(p)
            j -= 1
        while need_pad > 0:
            k = min(need_pad, 16)
            nop = Op(f"s_nop {k-1}", "salu")
            out.append(nop); info.append((set(), set()))
            need_pad -= k; npad += k
        out.append(op); info.append((R, W))
    return out, npad

def interleave(main, fillers, per_slot, slot_pred=None, start=0):
    out = []
    fi = 0; ns = 0
    for op in main:
        if op.kind == "slot":
            if ns >= start:
                k = per_slot(ns) if callable(per_slot) else per_slot
                for _ in range(k):
                    if fi < len(fillers):
                        out.extend(fillers[fi]); fi += 1
            ns += 1
        else:
            out.append(op)
    return out, fillers[fi:]

def finalize(ops):
    ops = [o for o in ops if o.kind != "slot"]
    ops = resolve_waits(ops)
    ops, npad = pad_hazards(ops)
    return "\n".join(("" if o.kind == "label" else "    ") + o.text for o in ops), npad
```

```python
import sys, importlib
from common import *

def build(kernels, path):
    hdr = open("cdna_kernels/" + NAME + ".s.ref").read().split("; Override launch")[0]
    out = hdr
    for name, txt, desc, l in kernels:
        out += f"; @launch kernel={name} grid=({l['grid']},1,1) block=({l['block']},1,1) lds={l['lds']}\n"
    out += '.amdgcn_target "amdgcn-amd-amdhsa--gfx950"\n.text\n'
    for name, txt, desc, l in kernels:
        out += txt
    out += '.section .rodata,"a"\n'
    for name, txt, desc, l in kernels:
        out += desc
    open(path, "w").write(out)
    return out
```

```python
from asmlib import *

NAME = "parallel_sum__linear_attn_block__dense_activation_relu__prompt"

KA_X, KA_WQKV, KA_WO, KA_BX, KA_W1, KA_W2, KA_OUT, KA_DBG, KA_WS = 0, 8, 16, 24, 32, 40, 48, 56, 64

S, D, DFF = 2048, 640, 1728
X_BYTES = S * D * 2
WQKV_BYTES = D * 3 * D * 2
WO_BYTES = D * D * 2
W1_BYTES = D * DFF * 2
W2_BYTES = DFF * D * 2
OUT_BYTES = S * D * 2

XN_OFF = 0x0
HF_OFF = 0x280000
W2F_OFF = 0xBC0000
KV_OFF = 0xEA8000
WS_USED = 0xEC0000
NKB = 74

def srd(st, base, lo, size):
    st(f"s_mov_b32 s{base}, s{lo}")
    st(f"s_mov_b32 s{base+1}, s{lo+1}")
    st(f"s_mov_b32 s{base+2}, {size}")
    st(f"s_mov_b32 s{base+3}, 0x20000")

def kernel_text(name, st):
    body, npad = finalize(st.ops)
    return (f".globl {name}\n.p2align 8\n.type {name},@function\n{name}:\n" + body + "\n"), npad

def descriptor(name, vgpr, accum, sgpr=102):
    return f""".p2align 6
.amdhsa_kernel {name}
  .amdhsa_next_free_vgpr {vgpr}
  .amdhsa_next_free_sgpr {sgpr}
  .amdhsa_accum_offset {accum}
  .amdhsa_group_segment_fixed_size 0
  .amdhsa_kernarg_size 72
  .amdhsa_user_sgpr_count 2
  .amdhsa_user_sgpr_kernarg_segment_ptr 1
  .amdhsa_system_sgpr_workgroup_id_x 1
  .amdhsa_float_denorm_mode_32 3
.end_amdhsa_kernel
"""
```

```python
from common import *

def gen_k0(name="prep_kernel"):
    st = Stream()
    L = name
    st("s_cmp_ge_u32 s2, 256")
    st(f"s_cbranch_scc1 {L}_end")
    st(f"s_load_dwordx2 s[4:5], s[0:1], {KA_X}")
    st(f"s_load_dwordx2 s[8:9], s[0:1], {KA_WO}")
    st(f"s_load_dwordx2 s[10:11], s[0:1], {KA_W2}")
    st(f"s_load_dwordx2 s[12:13], s[0:1], {KA_WS}")
    st("v_lshrrev_b32 v1, 6, v0")
    st("v_and_b32 v2, 63, v0")
    st("v_readfirstlane_b32 s14, v1")
    st.waitall(vm=False)
    srd(st, 16, 4, X_BYTES)
    srd(st, 20, 12, WS_USED)
    st("s_cmp_ge_u32 s14, 2")
    st(f"s_cbranch_scc1 {L}_fmt")
    st("s_lshl_b32 s15, s2, 3")
    st("s_lshl_b32 s28, s14, 2")
    st("s_add_u32 s15, s15, s28")
    st("v_lshrrev_b32 v3, 4, v2")
    st("v_add_u32 v3, s15, v3")
    st("v_and_b32 v4, 15, v2")
    st("v_mul_u32_u24 v5, 1280, v3")
    st("v_lshl_add_u32 v5, v4, 4, v5")
    for i in range(5):
        st(f"buffer_load_dwordx4 v[{32+4*i}:{35+4*i}], v5, s[16:19], 0 offen offset:{256*i}", tag="x")
    st("v_lshrrev_b32 v6, 5, v3")
    st("v_mul_u32_u24 v6, 40960, v6")
    st("v_lshrrev_b32 v7, 1, v4")
    st("v_lshl_add_u32 v6, v7, 10, v6")
    st("v_and_b32 v7, 31, v3")
    st("v_and_b32 v8, 1, v4")
    st("v_lshl_add_u32 v7, v8, 5, v7")
    st("v_lshl_add_u32 v6, v7, 4, v6")
    st.wait(vm="x")
    for i in range(20):
        st(f"v_lshlrev_b32 v{64+2*i}, 16, v{32+i}")
        st(f"v_and_b32 v{65+2*i}, 0xffff0000, v{32+i}")
    st("v_add_f32 v10, v64, v65")
    st("v_add_f32 v11, v66, v67")
    for i in range(2, 20):
        st(f"v_add_f32 v{10+(i&1)}, v{10+(i&1)}, v{64+2*i}")
        st(f"v_add_f32 v{10+(i&1)}, v{10+(i&1)}, v{65+2*i}")
    st("v_add_f32 v10, v10, v11")
    for r in (8, 4, 2, 1):
        st(f"v_add_f32_dpp v10, v10, v10 row_ror:{r} row_mask:0xf bank_mask:0xf")
    st("v_mul_f32 v10, 0x3acccccd, v10")
    st("v_mov_b32 v12, 0")
    st("v_mov_b32 v13, 0")
    for i in range(40):
        st(f"v_sub_f32 v14, v{64+i}, v10")
        st(f"v_fmac_f32 v{12+(i&1)}, v14, v14")
    st("v_add_f32 v12, v12, v13")
    for r in (8, 4, 2, 1):
        st(f"v_add_f32_dpp v12, v12, v12 row_ror:{r} row_mask:0xf bank_mask:0xf")
    st("v_mul_f32 v12, 0x3acccccd, v12")
    st("v_cvt_pk_bf16_f32 v10, v10, v12")
    st("v_and_b32 v12, 0xffff0000, v10")
    st("v_lshlrev_b32 v10, 16, v10")
    st("v_add_f32 v12, 0x3727c5ac, v12")
    st("v_cvt_pk_bf16_f32 v12, v12, v12")
    st("v_lshlrev_b32 v12, 16, v12")
    st("v_sqrt_f32 v12, v12")
    st("v_cvt_pk_bf16_f32 v12, v12, v12")
    st("v_lshlrev_b32 v12, 16, v12")
    st("v_rcp_f32 v12, v12")
    for i in range(40):
        st(f"v_sub_f32 v{64+i}, v{64+i}, v10")
    for i in range(40):
        st(f"v_mul_f32 v{64+i}, v{64+i}, v12")
    for i in range(20):
        st(f"v_cvt_pk_bf16_f32 v{32+i}, v{64+2*i}, v{65+2*i}")
    for i in range(5):
        st(f"s_mov_b32 s28, {XN_OFF + 8192*i}")
        st(f"buffer_store_dwordx4 v[{32+4*i}:{35+4*i}], v6, s[20:23], s28 offen")
    st.label(f"{L}_fmt")
    st("s_lshl_b32 s30, s2, 2")
    st("s_add_u32 s30, s30, s14")
    st("s_cmp_ge_u32 s30, 740")
    st(f"s_cbranch_scc1 {L}_zero")
    st("s_mul_i32 s31, s30, 52429")
    st("s_lshr_b32 s31, s31, 19")
    st("s_mul_i32 s28, s31, 10")
    st("s_sub_u32 s32, s30, s28")
    st("s_lshl_b32 s33, s31, 5")
    st("s_add_u32 s34, s33, 16")
    st("s_mov_b32 s24, s10")
    st("s_mov_b32 s25, s11")
    st(f"s_mov_b32 s26, {W2_BYTES}")
    st("s_mov_b32 s27, 0x20000")
    st("s_cmp_lt_u32 s31, 54")
    st(f"s_cbranch_scc1 {L}_rows")
    st("s_mov_b32 s24, s8")
    st("s_mov_b32 s25, s9")
    st(f"s_mov_b32 s26, {WO_BYTES}")
    st("s_sub_u32 s35, s31, 54")
    st("s_mul_i32 s36, s35, 52429")
    st("s_lshr_b32 s36, s36, 18")
    st("s_mul_i32 s28, s36, 5")
    st("s_sub_u32 s35, s35, s28")
    st("s_mul_i32 s36, s36, 160")
    T0 = [0, 32, 64, 80, 112]; T1 = [16, 48, 144, 96, 128]
    st(f"s_mov_b32 s33, {T0[0]}")
    st(f"s_mov_b32 s34, {T1[0]}")
    for f in range(1, 5):
        st(f"s_cmp_eq_u32 s35, {f}")
        st(f"s_cselect_b32 s33, {T0[f]}, s33")
        st(f"s_cselect_b32 s34, {T1[f]}, s34")
    st("s_add_u32 s33, s33, s36")
    st("s_add_u32 s34, s34, s36")
    st.label(f"{L}_rows")
    st("v_lshrrev_b32 v3, 3, v2")
    st("v_mul_u32_u24 v3, 1280, v3")
    st("v_and_b32 v4, 7, v2")
    st("v_lshl_add_u32 v3, v4, 4, v3")
    st("s_lshl_b32 s37, s32, 7")
    st("s_lshl_b32 s38, s14, 12")
    for i in range(4):
        rb = 33 + (i >> 1)
        st(f"s_add_u32 s28, s{rb}, {8*(i&1)}")
        st("s_mul_i32 s28, s28, 1280")
        st("s_add_u32 s28, s28, s37")
        st(f"s_add_u32 m0, s38, {1024*i}")
        st("buffer_load_dwordx4 v3, s[24:27], s28 offen lds", tag="t")
    st("v_lshrrev_b32 v4, 4, v2")
    st("v_lshrrev_b32 v5, 1, v4")
    st("v_and_b32 v4, 1, v4")
    st("v_lshlrev_b32 v5, 4, v5")
    st("v_lshl_add_u32 v5, v4, 2, v5")
    st("v_bfe_u32 v4, v2, 2, 2")
    st("v_add_u32 v5, v5, v4")
    st("v_lshlrev_b32 v5, 7, v5")
    st("v_and_b32 v4, 3, v2")
    st("v_lshl_add_u32 v5, v4, 3, v5")
    st("v_add_u32 v5, s38, v5")
    st("v_lshlrev_b32 v7, 4, v2")
    st.wait(vm="t")
    for j in range(4):
        st(f"ds_read_b64_tr_b16 v[{16+4*j}:{17+4*j}], v5 offset:{32*j}", tag=f"r{j}")
        st(f"ds_read_b64_tr_b16 v[{18+4*j}:{19+4*j}], v5 offset:{32*j+1024}", tag=f"r{j}")
    for j in range(4):
        st("s_lshl_b32 s28, s32, 2")
        st(f"s_add_u32 s28, s28, {j}")
        st("s_mul_i32 s29, s28, 52429")
        st("s_lshr_b32 s29, s29, 18")
        st("s_mul_i32 s39, s29, 5")
        st("s_sub_u32 s28, s28, s39")
        st(f"s_mul_i32 s29, s29, {NKB}")
        st("s_add_u32 s29, s29, s31")
        st("s_mul_i32 s29, s29, 5")
        st("s_add_u32 s29, s29, s28")
        st("s_lshl_b32 s29, s29, 10")
        st(f"s_add_u32 s29, s29, {W2F_OFF}")
        st.wait(lg=f"r{j}")
        st(f"buffer_store_dwordx4 v[{16+4*j}:{19+4*j}], v7, s[20:23], s29 offen")
    st.label(f"{L}_zero")
    st("s_cmp_lg_u32 s14, 3")
    st(f"s_cbranch_scc1 {L}_end")
    st("s_cmp_ge_u32 s2, 64")
    st(f"s_cbranch_scc1 {L}_end")
    st("v_lshlrev_b32 v7, 4, v2")
    for i in range(4):
        st(f"v_mov_b32 v{8+i}, 0")
    st("s_lshl_b32 s28, s2, 10")
    st(f"s_add_u32 s28, s28, {KV_OFF}")
    st("buffer_store_dwordx4 v[8:11], v7, s[20:23], s28 offen")
    st.label(f"{L}_end")
    st("s_endpgm")
    txt, npad = kernel_text(name, st)
    return txt, descriptor(name, 128, 128), dict(grid=256, block=256, lds=16384)
```

```python
from common import *

SLOT = 20480
NSLOT, DIST, LOOK = 6, 4, 4
NFR = LOOK + 2
KVP = NSLOT * SLOT
KVP_PITCH = 336
K1_LDS = KVP + 32768 + 1280
LOG2E = 0x3fb8aa3b
EPS6 = 0x358637bd

for c in range(320): assert (c * 3277) >> 16 == c // 20
for c in range(192): assert (c * 5462) >> 16 == c // 12
for c in range(512): assert (c * 625) >> 16 == c // 105
for c in range(105): assert (c * 13108) >> 16 == c // 5

V_LANE = 2
V_D1 = 3
V_D2 = 8
V_L16 = 11
V_T1 = 12
V_T2 = 14
ACC1 = 16
ACC2 = 96
FR = 144
V_H = 168
V_KVA = 169
V_Z = 170
V_W = 170
TMP = 176
S_WS = 20; S_W1 = 24; S_W2 = 28; S_DBG = 32
S_WAVE = 14; S_G = 15; S_R = 16; S_XN = 17; S_M1 = 18; S_M2 = 19
S_K1 = 36; S_K2 = 37; S_H = 38; S_T = 40
S_PITCH1, S_PITCH2 = 48, 49
S_O = 50
S_EPS = 56; S_L2E = 57; S_KV = 58; S_HALF = 60

def relu_pack_store(acc, sbase, imm, tagname="hst"):
    G = []
    for p in range(8):
        s = Stream()
        s(f"v_cvt_pk_bf16_f32 v{acc+p}, v{acc+2*p}, v{acc+2*p+1}")
        G.append(s.ops)
        s = Stream()
        s(f"v_pk_max_i16 v{acc+p}, v{acc+p}, 0")
        G.append(s.ops)
    for u in range(2):
        s = Stream()
        s(f"buffer_store_dwordx4 v[{acc+4*u}:{acc+4*u+3}], v{V_H}, s[{S_WS}:{S_WS+3}], s{sbase} offen offset:{imm+512*u}", tag=tagname)
        G.append(s.ops)
    return G

def phi(st, src, t0, t1):
    st(f"v_min_f32 v{t0}, 0, v{src}")
    st(f"v_mul_f32 v{t0}, s{S_L2E}, v{t0}")
    st(f"v_exp_f32 v{t0}, v{t0}")
    st(f"v_max_f32 v{src}, 0, v{src}")
    st(f"v_add_f32 v{src}, s{S_EPS}, v{src}")
    st(f"v_add_f32 v{src}, v{src}, v{t0}")

def phi_groups(regs, tbase, ntmp=4):
    G = []
    def one(txt):
        s = Stream(); s(txt); G.append(s.ops)
    n = len(regs)
    for i0 in range(0, n, ntmp):
        blk = regs[i0:i0+ntmp]
        for k, r in enumerate(blk): one(f"v_min_f32 v{tbase+k}, 0, v{r}")
        for k, r in enumerate(blk): one(f"v_mul_f32 v{tbase+k}, s{S_L2E}, v{tbase+k}")
        for k, r in enumerate(blk): one(f"v_exp_f32 v{tbase+k}, v{tbase+k}")
        for k, r in enumerate(blk): one(f"v_max_f32 v{r}, 0, v{r}")
        for k, r in enumerate(blk): one(f"v_add_f32 v{r}, s{S_EPS}, v{r}")
        for k, r in enumerate(blk): one(f"v_add_f32 v{r}, v{r}, v{tbase+k}")
    return G

class Passes:
    def __init__(self, st, typ):
        self.st = st; self.typ = typ
        self.nb2 = 2 if typ == "A" else 3
        self.items = [(1, t, b) for t in range(40) for b in range(5)] + [(2, t, b) for t in range(40) for b in range(self.nb2)]
        self.pend = []; self.gq = []
        self.nread = 0
    def group(self, s):
        g = Stream()
        if s >= 20: return g
        slot = s % NSLOT
        if s < 10:
            g(f"s_add_u32 s{S_T}, s{S_K1}, {s} * 64 * {'3840' if self.typ == 'A' else '3456'}")
            for i in range(5):
                g(f"s_add_u32 m0, s{S_M1}, {slot*SLOT + 1024*i}")
                g(f"buffer_load_dwordx4 v{V_D1+i}, s[{S_W1}:{S_W1+3}], s{S_T} offen lds", tag=f"G{s}")
            g(f"s_add_u32 s{S_T+1}, s{S_XN}, {4096*s}")
            for i in range(4):
                t = 4 * s + i
                g(f"buffer_load_dwordx4 a[{4*t}:{4*t+3}], v{V_L16}, s[{S_WS}:{S_WS+3}], s{S_T+1} offen offset:{1024*i}", tag=f"G{s}")
        else:
            g(f"s_add_u32 s{S_T}, s{S_K2}, {s-10} * 64 * {'3456' if self.typ == 'A' else '3840'}")
            for i in range(3):
                g(f"s_add_u32 m0, s{S_M2}, {slot*SLOT + 1024*i}")
                g(f"buffer_load_dwordx4 v{V_D2+i}, s[{S_W2}:{S_W2+3}], s{S_T} offen lds", tag=f"G{s}")
        return g
    def frag(self, i): return FR + 4 * (i % NFR)
    def read(self, i):
        st = self.st
        p, t, b = self.items[i]
        s = (0 if p == 1 else 10) + t // 4
        slot = s % NSLOT
        pitch = 320 if p == 1 else 192
        off = slot * SLOT + (t & 3) * 16 * pitch + 64 * b
        base = V_T1 if p == 1 else V_T2
        if off >= 3 * SLOT: base += 1; off -= 3 * SLOT
        r = self.frag(i)
        if t % 4 == 0 and b == 0:
            st.wait(vm=f"G{s}")
            st("s_barrier")
            self.pend.append(s + DIST)
        st(f"ds_read_b64_tr_b16 v[{r}:{r+1}], v{base} offset:{off}", tag=f"F{i}")
        st(f"ds_read_b64_tr_b16 v[{r+2}:{r+3}], v{base} offset:{off + 4*pitch}", tag=f"F{i}")
    def prologue(self):
        for s in range(DIST): self.st.extend(self.group(s))
    def start(self):
        for i in range(LOOK): self.read(i)
        self.nread = LOOK
    def run(self, lo, hi, fillers=None, per_slot=2):
        st = self.st
        fillers = fillers if fillers is not None else []
        for i in range(lo, hi):
            p, t, b = self.items[i]
            while self.pend:
                self.gq.extend(self.group(self.pend.pop(0)).ops)
            st.wait(lg=f"F{i}")
            r = self.frag(i)
            acc = (ACC1 if p == 1 else ACC2) + 16 * b
            cin = "0" if t == 0 else f"v[{acc}:{acc+15}]"
            W = f"v[{r}:{r+3}]"; X = f"a[{4*t}:{4*t+3}]"
            if p == 1 and self.typ == "A":
                st(f"v_mfma_f32_32x32x16_bf16 v[{acc}:{acc+15}], {X}, {W}, {cin}")
            else:
                st(f"v_mfma_f32_32x32x16_bf16 v[{acc}:{acc+15}], {W}, {X}, {cin}")
            used = 0
            while self.gq:
                op = self.gq.pop(0); st.ops.append(op)
                if op.kind == "vmem": used = 1; break
            if i + LOOK < len(self.items): self.read(i + LOOK)
            for _ in range(per_slot - used):
                if fillers: st.ops.extend(fillers.pop(0))
        return fillers

def flush(st, groups):
    for g in groups: st.ops.extend(g)

def head(x): return x // 20

def kv_epilogue_A(st, L):
    PK = [TMP, TMP + 8, TMP + 16]; VB = [TMP + 24, TMP + 32, TMP + 40]; T = TMP + 48
    for vb, b in ((0, 2), (1, 3), (2, 4)):
        a = ACC1 + 16 * b
        for p in range(8):
            st(f"v_cvt_pk_bf16_f32 v{VB[vb]+p}, v{a+2*p}, v{a+2*p+1}")
    st(f"v_mov_b32 v{T}, 0x3f803f80")
    for p in range(8):
        st(f"v_cndmask_b32 v{VB[0]+p}, v{VB[0]+p}, v{T}, s[{S_HALF+2}:{S_HALF+3}]")
    for kb in range(3):
        a = ACC1 + 16 * kb
        flush(st, phi_groups([a + i for i in range(16)], T, 8))
        for p in range(8):
            st(f"v_cvt_pk_bf16_f32 v{PK[kb]+p}, v{a+2*p}, v{a+2*p+1}")
    tiles = [(0, 0), (1, 0), (1, 1), (2, 1), (2, 2), (0, 1), (0, 2)]
    DT = [ACC1 + 16 * i for i in range(7)]
    for tau in range(2):
        for n, (ve, kd) in enumerate(tiles):
            d = DT[n]
            cin = "0" if tau == 0 else f"v[{d}:{d+15}]"
            st(f"v_mfma_f32_32x32x16_bf16 v[{d}:{d+15}], v[{VB[ve]+4*tau}:{VB[ve]+4*tau+3}], v[{PK[kd]+4*tau}:{PK[kd]+4*tau+3}], {cin}")
    eoff = {0: -16, 1: 16, 2: 48}
    cnt = 0
    for n, (ve, kd) in enumerate(tiles):
        for i in range(16):
            mask = 0
            for l in range(64):
                c, h = l & 31, l >> 5
                m = 8 * (i >> 2) + 4 * h + (i & 3)
                d = 32 * kd + c
                if d >= 80: continue
                if ve == 0 and m < 16: continue
                e = eoff[ve] + m
                if e >= 80: continue
                if n >= 5: continue
                if head(e) == head(d): mask |= 1 << l
            if mask:
                e0 = eoff[ve] + 8 * (i >> 2) + (i & 3)
                st(f"s_mov_b32 exec_lo, 0x{mask & 0xffffffff:x}")
                st(f"s_mov_b32 exec_hi, 0x{mask >> 32:x}")
                st(f"ds_add_f32 v{V_KVA}, v{DT[n]+i} offset:{128*kd + 80*e0 + 16*80}", tag="kvadd")
                cnt += 1
        if ve == 0:
            mask = 0
            for c in range(32):
                if 32 * kd + c < 80: mask |= 1 << c
            st(f"s_mov_b32 exec_lo, 0x{mask:x}")
            st("s_mov_b32 exec_hi, 0")
            st(f"ds_add_f32 v{V_Z+kd}, v{DT[n]}", tag="kvadd")
            cnt += 1
    st("s_mov_b64 exec, -1")
    st.wait(lg="kvadd")
    st("s_barrier")
    st(f"v_lshlrev_b32 v{T}, 2, v0")
    st(f"v_add_u32 v{T+1}, {KVP}, v{T}")
    for i in range(7):
        st(f"ds_read_b32 v{T+2+i}, v{T+1} offset:{1024*i}", tag=f"kr{i}")
    st(f"s_add_u32 s{S_T+2}, s{S_KV}, 4096")
    for i in range(7):
        st.wait(lg=f"kr{i}")
        sreg = S_KV if i < 4 else S_T + 2
        st(f"buffer_atomic_add_f32 v{T+2+i}, v{T}, s[{S_WS}:{S_WS+3}], s{sreg} offen offset:{1024*(i&3)}", tag="kvat")
    return cnt

def signal_kv(st, L):
    st.wait(vm="kvat")
    st("s_barrier")
    st(f"s_cmp_lg_u32 s{S_WAVE}, 0")
    st(f"s_cbranch_scc1 {L}_sigdone")
    st(f"v_mov_b32 v{TMP}, 1")
    st(f"s_lshl_b32 s{S_T}, s{S_G}, 2")
    st(f"v_mov_b32 v{TMP+1}, s{S_T}")
    st("s_mov_b64 exec, 1")
    st(f"buffer_atomic_add v{TMP}, v{TMP+1}, s[{S_DBG}:{S_DBG+3}], 0 offen", note="cond")
    st("s_mov_b64 exec, -1")
    st.label(f"{L}_sigdone")

def o_epilogue_B(st, L):
    T = TMP + 48
    for b in range(3):
        a = ACC2 + 16 * b
        n = 16 if b < 2 else 8
        flush(st, phi_groups([a + i for i in range(n)], T, 8))
        for p in range(n // 2):
            st(f"v_cvt_pk_bf16_f32 v{a+p}, v{a+2*p}, v{a+2*p+1}")
    st(f"s_cmp_lg_u32 s{S_WAVE}, 0")
    st(f"s_cbranch_scc1 {L}_polled")
    st(f"s_lshl_b32 s{S_T}, s{S_G}, 2")
    st(f"v_mov_b32 v{T+1}, s{S_T}")
    st(f"s_mov_b32 s{S_T+1}, 0")
    st.label(f"{L}_poll")
    st(f"buffer_load_dword v{T}, v{T+1}, s[{S_DBG}:{S_DBG+3}], 0 offen sc0 sc1", note="cond")
    st("s_waitcnt vmcnt(0)", note="cond")
    st(f"v_readfirstlane_b32 s{S_T}, v{T}")
    st(f"s_add_u32 s{S_T+1}, s{S_T+1}, 1")
    st(f"s_cmp_ge_u32 s{S_T+1}, 0x40000")
    st(f"s_cbranch_scc1 {L}_polled")
    st(f"s_cmp_lt_u32 s{S_T}, 16")
    st(f"s_cbranch_scc1 {L}_poll")
    st.label(f"{L}_polled")
    st("s_barrier")
    st(f"v_lshlrev_b32 v{T}, 4, v0")
    st(f"s_add_u32 s{S_T+2}, s{S_KV}, 4096")
    st(f"buffer_load_dwordx4 v[{T+4}:{T+7}], v{T}, s[{S_WS}:{S_WS+3}], s{S_KV} offen sc0 sc1", tag="kvl0")
    st(f"buffer_load_dwordx4 v[{T+8}:{T+11}], v{T}, s[{S_WS}:{S_WS+3}], s{S_T+2} offen sc0 sc1", tag="kvl1")
    st.wait(vm="kvl0")
    st(f"ds_write_b128 v{V_W}, v[{T+4}:{T+7}]", tag="kvw")
    st(f"ds_write_b128 v{V_W+1}, v[{T+4}:{T+7}]", tag="kvw")
    st.wait(vm="kvl1")
    st(f"ds_write_b128 v{V_W+2}, v[{T+8}:{T+11}]", tag="kvw")
    st(f"ds_write_b128 v{V_W+3}, v[{T+8}:{T+11}]", tag="kvw")
    st.wait(lg="kvw")
    st("s_barrier")
    frs = [(0, 0), (0, 1), (0, 2), (1, 1), (1, 2), (1, 3), (1, 4), (2, 0), (2, 1), (2, 2), (2, 3), (2, 4)]
    AF = ACC1
    RT = ACC1 + 48
    DT = TMP
    def rd(n):
        E, tp = frs[n]
        r = RT + 8 * (n % 4)
        off = 32 * E * KVP_PITCH + 64 * tp
        st(f"ds_read_b128 v[{r}:{r+3}], v{V_KVA} offset:{off}", tag=f"kf{n}")
        st(f"ds_read_b128 v[{r+4}:{r+7}], v{V_KVA} offset:{off+32}", tag=f"kf{n}")
    for n in range(4): rd(n)
    first = {0: True, 1: True, 2: True}
    for n, (E, tp) in enumerate(frs):
        r = RT + 8 * (n % 4); f = AF + 4 * n
        st.wait(lg=f"kf{n}")
        for k in range(4):
            st(f"v_cvt_pk_bf16_f32 v{f+k}, v{r+2*k}, v{r+2*k+1}")
        if n + 4 < 12: rd(n + 4)
        q = ACC2 + 16 * (tp >> 1) + 4 * (tp & 1)
        d = DT + 16 * E
        cin = "0" if first[E] else f"v[{d}:{d+15}]"
        first[E] = False
        st(f"v_mfma_f32_32x32x16_bf16 v[{d}:{d+15}], v[{f}:{f+3}], v[{q}:{q+3}], {cin}")
    RD = T
    d2 = DT + 32
    for h in range(4):
        st(f"v_add_f32 v{RD+h}, s{S_EPS}, v{d2+8+h}")
    for h in range(4):
        st(f"v_rcp_f32 v{RD+h}, v{RD+h}")
    st(f"v_cndmask_b32 v{RD+4}, v{RD+0}, v{RD+1}, s[{S_HALF}:{S_HALF+1}]")
    st(f"v_cndmask_b32 v{RD+5}, v{RD+2}, v{RD+3}, s[{S_HALF}:{S_HALF+1}]")
    sel = {0: RD, 1: RD, 2: RD + 4, 3: RD + 1, 4: RD + 1, 5: RD + 2, 6: RD + 2, 7: RD + 5, 8: RD + 3, 9: RD + 3}
    for hb in range(5):
        a = DT + 16 * (hb >> 1) + 8 * (hb & 1)
        for i in range(8):
            Q = 2 * hb + (i >> 2)
            st(f"v_mul_f32 v{a+i}, v{a+i}, v{sel[Q]}")
        for p in range(4):
            st(f"v_cvt_pk_bf16_f32 v{a+p}, v{a+2*p}, v{a+2*p+1}")
        st(f"buffer_store_dwordx4 v[{a}:{a+3}], v{V_H}, s[{S_WS}:{S_WS+3}], s{S_O+hb} offen", tag="ost")

def gen_k1(name="proj_kernel"):
    st = Stream()
    L = name
    st("s_cmp_ge_u32 s2, 256")
    st(f"s_cbranch_scc1 {L}_end")
    st(f"s_load_dwordx2 s[4:5], s[0:1], {KA_WQKV}")
    st(f"s_load_dwordx2 s[6:7], s[0:1], {KA_W1}")
    st(f"s_load_dwordx2 s[8:9], s[0:1], {KA_DBG}")
    st(f"s_load_dwordx2 s[12:13], s[0:1], {KA_WS}")
    st("v_lshrrev_b32 v1, 6, v0")
    st(f"v_and_b32 v{V_LANE}, 63, v0")
    st(f"v_readfirstlane_b32 s{S_WAVE}, v1")
    st("s_and_b32 s40, s2, 7")
    st("s_lshr_b32 s41, s2, 3")
    st("s_and_b32 s42, s40, 1")
    st("s_lshl_b32 s42, s42, 3")
    st("s_and_b32 s43, s41, 7")
    st(f"s_add_u32 s{S_R}, s42, s43")
    st("s_lshr_b32 s42, s40, 1")
    st("s_lshl_b32 s42, s42, 1")
    st("s_bfe_u32 s43, s41, 0x10003")
    st(f"s_add_u32 s{S_G}, s42, s43")
    st(f"s_lshl_b32 s42, s{S_R}, 2")
    st(f"s_add_u32 s42, s42, s{S_WAVE}")
    st(f"s_mul_i32 s{S_XN}, s42, 40960")
    st(f"s_add_u32 s{S_XN}, s{S_XN}, {XN_OFF}")
    st(f"s_mul_i32 s{S_H}, s42, {2*NKB*1024}")
    st(f"s_add_u32 s{S_H}, s{S_H}, {HF_OFF}")
    st(f"s_mul_i32 s{S_M1}, s{S_WAVE}, 5120")
    st(f"s_mul_i32 s{S_M2}, s{S_WAVE}, 3072")
    st(f"s_lshl_b32 s{S_KV}, s{S_G}, 13")
    st(f"s_add_u32 s{S_KV}, s{S_KV}, {KV_OFF}")
    st(f"s_mov_b32 s{S_EPS}, 0x{EPS6:x}")
    st(f"s_mov_b32 s{S_L2E}, 0x{LOG2E:x}")
    st(f"s_mov_b32 s{S_HALF}, 0")
    st(f"s_mov_b32 s{S_HALF+1}, -1")
    st(f"s_mov_b32 s{S_HALF+2}, 0x0000ffff")
    st(f"s_mov_b32 s{S_HALF+3}, 0x0000ffff")
    l = V_LANE
    st(f"v_lshlrev_b32 v{V_L16}, 4, v{l}")
    st(f"v_lshrrev_b32 v16, 5, v{l}")
    st(f"v_lshlrev_b32 v16, 3, v16")
    st(f"v_bfe_u32 v17, v{l}, 2, 2")
    st("v_add_u32 v16, v16, v17")
    st(f"v_bfe_u32 v17, v{l}, 4, 1")
    st("v_lshlrev_b32 v17, 5, v17")
    st(f"v_and_b32 v18, 3, v{l}")
    st("v_lshl_add_u32 v17, v18, 3, v17")
    st("v_mul_u32_u24 v18, 320, v16")
    st(f"v_add_u32 v{V_T1}, v18, v17")
    st(f"v_add_u32 v{V_T1+1}, {3*SLOT}, v{V_T1}")
    st("v_mul_u32_u24 v18, 192, v16")
    st(f"v_add_u32 v{V_T2}, v18, v17")
    st(f"v_add_u32 v{V_T2+1}, {3*SLOT}, v{V_T2}")
    st(f"v_bfe_u32 v16, v{l}, 4, 1")
    st(f"v_mul_u32_u24 v16, {NKB*1024}, v16")
    st(f"v_and_b32 v17, 15, v{l}")
    st("v_lshl_add_u32 v16, v17, 4, v16")
    st(f"v_lshrrev_b32 v17, 5, v{l}")
    st(f"v_lshl_add_u32 v{V_H}, v17, 8, v16")
    for i in range(5):
        st(f"v_add_u32 v16, {64*i}, v{l}")
        st(f"v_mul_u32_u24 v{20+i}, 3277, v16")
        st(f"v_lshrrev_b32 v{20+i}, 16, v{20+i}")
        st(f"v_mul_u32_u24 v17, 20, v{20+i}")
        st(f"v_sub_u32 v{25+i}, v16, v17")
    for i in range(3):
        st(f"v_add_u32 v16, {64*i}, v{l}")
        st(f"v_mul_u32_u24 v{30+i}, 5462, v16")
        st(f"v_lshrrev_b32 v{30+i}, 16, v{30+i}")
        st(f"v_mul_u32_u24 v17, 12, v{30+i}")
        st(f"v_sub_u32 v{33+i}, v16, v17")
    st.waitall(vm=False)
    srd(st, S_WS, 12, WS_USED)
    srd(st, S_DBG, 8, 256)
    st("s_cmp_ge_u32 s2, 128")
    st(f"s_cbranch_scc1 {L}_B")

    srd(st, S_W1, 4, WQKV_BYTES)
    srd(st, S_W2, 6, W1_BYTES)
    st(f"s_mul_i32 s{S_K1}, s{S_WAVE}, {16*3840}")
    st(f"s_mul_i32 s{S_K2}, s{S_WAVE}, {16*3456}")
    st(f"s_mul_i32 s40, s{S_G}, 160")
    st("s_add_u32 s40, s40, 1280")
    for i in range(5):
        st(f"v_mul_u32_u24 v16, 3840, v{20+i}")
        st(f"v_lshl_add_u32 v16, v{25+i}, 4, v16")
        st(f"v_cmp_le_u32 vcc, 10, v{25+i}")
        st("v_mov_b32 v17, 0")
        st("v_mov_b32 v18, 1120")
        st("v_cndmask_b32 v17, v17, v18, vcc")
        st("v_add_u32 v16, v16, v17")
        st(f"v_add_u32 v{V_D1+i}, s40, v16")
    st(f"s_lshl_b32 s40, s{S_G}, 7")
    for i in range(3):
        st(f"v_mul_u32_u24 v16, 3456, v{30+i}")
        st(f"v_and_b32 v17, 7, v{33+i}")
        st("v_lshl_add_u32 v16, v17, 4, v16")
        st(f"v_add_u32 v{V_D2+i}, s40, v16")
    PA = Passes(st, "A")
    PA.prologue()
    st(f"v_and_b32 v16, 31, v{l}")
    st(f"v_lshrrev_b32 v17, 5, v{l}")
    st("v_mul_u32_u24 v17, 320, v17")
    st("v_lshl_add_u32 v17, v16, 2, v17")
    st(f"v_add_u32 v{V_KVA}, {KVP - 16*80}, v17")
    for kd in range(3):
        st(f"v_add_u32 v17, {32*kd}, v16")
        st("v_mul_u32_u24 v18, 3277, v17")
        st("v_lshrrev_b32 v18, 16, v18")
        st("v_mul_u32_u24 v18, 1600, v18")
        st("v_lshl_add_u32 v18, v17, 2, v18")
        st(f"v_add_u32 v{V_Z+kd}, {KVP + 1600}, v18")
    for i in range(4): st(f"v_mov_b32 v{16+i}, 0")
    st("v_lshlrev_b32 v20, 4, v0")
    st(f"v_add_u32 v20, {KVP}, v20")
    st("ds_write_b128 v20, v[16:19]", tag="z")
    st("ds_write_b128 v20, v[16:19] offset:4096", tag="z")
    st.wait(lg="z")
    PA.start()
    PA.run(0, 200)
    cnt = kv_epilogue_A(st, L + "_A")
    st(f"s_lshl_b32 s{S_T+3}, s{S_G}, 11")
    st(f"s_add_u32 s{S_T+3}, s{S_T+3}, s{S_H}")
    PA.run(200, 240)
    signal_kv(st, L + "_A")
    PA.run(240, 280)
    for b in range(2):
        flush(st, relu_pack_store(ACC2 + 16 * b, S_T + 3, 1024 * b))
    st(f"s_branch {L}_end")

    st.label(f"{L}_B")
    srd(st, S_W1, 6, W1_BYTES)
    srd(st, S_W2, 4, WQKV_BYTES)
    st(f"s_mul_i32 s{S_K1}, s{S_WAVE}, {16*3456}")
    st(f"s_mul_i32 s{S_K2}, s{S_WAVE}, {16*3840}")
    st(f"s_mul_i32 s44, s{S_G}, 5")
    st("s_add_u32 s44, s44, 16")
    st(f"s_cmp_eq_u32 s{S_G}, 6")
    st("s_cselect_b32 s44, 45, s44")
    st(f"s_cmp_eq_u32 s{S_G}, 7")
    st("s_cselect_b32 s44, 49, s44")
    st("s_lshl_b32 s40, s44, 6")
    for i in range(5):
        st(f"v_mul_u32_u24 v16, 3456, v{20+i}")
        st(f"v_lshl_add_u32 v16, v{25+i}, 4, v16")
        st(f"v_add_u32 v{V_D1+i}, s40, v16")
    st(f"s_mul_i32 s40, s{S_G}, 160")
    for i in range(3):
        st(f"v_mul_u32_u24 v16, 3840, v{30+i}")
        st(f"v_subrev_u32 v17, 10, v{33+i}")
        st(f"v_cmp_gt_u32 vcc, 10, v{33+i}")
        st(f"v_cndmask_b32 v17, v17, v{33+i}, vcc")
        st("v_lshl_add_u32 v16, v17, 4, v16")
        st(f"v_add_u32 v{V_D2+i}, s40, v16")
    PB = Passes(st, "B")
    PB.prologue()
    st("s_lshl_b32 s44, s44, 10")
    st(f"s_add_u32 s{S_T+3}, s44, s{S_H}")
    st(f"s_add_u32 s{S_T+4}, s{S_T+3}, 4096")
    st(f"s_lshr_b32 s40, s{S_G}, 1")
    st("s_mul_i32 s40, s40, 5120")
    st(f"s_add_u32 s40, s40, {54*1024}")
    st(f"s_add_u32 s40, s40, s{S_H}")
    st(f"s_bitcmp1_b32 s{S_G}, 0")
    ev = [0, 512, 1024, 1536, 2048]; od = [3072, 3584, 4096, 4608, 2560]
    for hb in range(5):
        st(f"s_mov_b32 s{S_O+hb}, {ev[hb]}")
        st(f"s_cmov_b32 s{S_O+hb}, {od[hb]}")
    for hb in range(5):
        st(f"s_add_u32 s{S_O+hb}, s{S_O+hb}, s40")
    st(f"v_and_b32 v16, 31, v{l}")
    st(f"v_mul_u32_u24 v16, {KVP_PITCH}, v16")
    st(f"v_lshrrev_b32 v17, 5, v{l}")
    st("v_lshl_add_u32 v16, v17, 4, v16")
    st(f"v_add_u32 v{V_KVA}, {KVP}, v16")
    DUMMY = KVP + 96 * KVP_PITCH
    for i in range(2):
        st(f"v_add_u32 v16, {256*i}, v0")
        st("v_mul_u32_u24 v17, 625, v16")
        st("v_lshrrev_b32 v17, 16, v17")
        st("v_mul_u32_u24 v18, 105, v17")
        st("v_sub_u32 v18, v16, v18")
        st("v_mul_u32_u24 v19, 13108, v18")
        st("v_lshrrev_b32 v19, 16, v19")
        st("v_mul_u32_u24 v20, 5, v19")
        st("v_sub_u32 v20, v18, v20")
        st("v_mul_u32_u24 v21, 5, v17")
        st("v_add_u32 v20, v20, v21")
        st("v_lshlrev_b32 v20, 4, v20")
        st("v_mul_u32_u24 v21, 20, v17")
        st("v_add_u32 v21, v21, v19")
        st("v_add_u32 v22, 80, v17")
        st("v_cmp_eq_u32 vcc, 20, v19")
        st("v_cndmask_b32 v21, v21, v22, vcc")
        st(f"v_mul_u32_u24 v21, {KVP_PITCH}, v21")
        st("v_add_u32 v21, v21, v20")
        st(f"v_add_u32 v21, {KVP}, v21")
        st(f"v_add_u32 v22, {4*KVP_PITCH}, v21")
        st(f"v_mov_b32 v23, {DUMMY}")
        st("v_cndmask_b32 v22, v23, v22, vcc")
        st(f"v_cmp_gt_u32 vcc, 420, v16")
        st(f"v_cndmask_b32 v{V_W+2*i}, v23, v21, vcc")
        st(f"v_cndmask_b32 v{V_W+2*i+1}, v23, v22, vcc")
    for i in range(4): st(f"v_mov_b32 v{16+i}, 0")
    st("v_lshlrev_b32 v20, 4, v0")
    st(f"v_add_u32 v20, {KVP}, v20")
    for i in range(8):
        st(f"ds_write_b128 v20, v[16:19] offset:{4096*i}", tag="z")
    st.wait(lg="z")
    PB.start()
    PB.run(0, 200)
    fill = []
    for b in range(5):
        fill += relu_pack_store(ACC1 + 16 * b, S_T + 3 if b < 4 else S_T + 4, 1024 * (b & 3))
    PB.run(200, 204, per_slot=0)
    rest = PB.run(204, 320, fill)
    flush(st, rest)
    o_epilogue_B(st, L + "_B")
    st.label(f"{L}_end")
    st("s_endpgm")
    txt, npad = kernel_text(name, st)
    print("k1: hazard pad states", npad, "ds_add count", cnt)
    return txt, descriptor(name, 512, 256), dict(grid=256, block=256, lds=K1_LDS)
```

```python
from common import *

SLOT = 20480
def slot_marker(): return Op("<slot>", "slot")

def s2_body(st, L, R):
    NSLOT, DIST, LOOK = 6, 4, 4
    sws, sx, so = R["ws"], R["x"], R["out"]
    vL16 = R["vl16"]
    vRd = R["vrd"]; vRd2 = R["vrd2"]
    ACC = R["acc"]; FR = R["frag"]; NFR = LOOK + 2
    AR = R["aring"]; NAR = 4 * NSLOT
    sA, sB, sM, sT = R["sA"], R["sB"], R["sM"], R["sT"]
    RES = R["res"]; vX = R["vxaddr"]
    nst = (NKB + 3) // 4
    st(f"s_lshl_b32 s{sA}, s{R['rho']}, 2")
    st(f"s_add_u32 s{sA}, s{sA}, s{R['w']}")
    st(f"s_mul_i32 s{sA}, s{sA}, {NKB*1024}")
    st(f"s_add_u32 s{sA}, s{sA}, {HF_OFF}")
    st(f"s_mul_i32 s{sB}, s{R['c']}, {NKB*5120}")
    st(f"s_add_u32 s{sB}, s{sB}, {W2F_OFF}")
    st(f"s_mul_i32 s{sM}, s{R['w']}, 5120")
    st(f"v_lshlrev_b32 v{vL16}, 4, v{R['lane']}")
    st(f"v_mov_b32 v{vRd}, v{vL16}")
    st(f"v_add_u32 v{vRd2}, {3*SLOT}, v{vL16}")
    st(f"v_and_b32 v{vX}, 15, v{R['lane']}")
    st(f"s_lshl_b32 s{sT}, s{R['rho']}, 6")
    st(f"s_lshl_b32 s{sT+1}, s{R['w']}, 4")
    st(f"s_add_u32 s{sT}, s{sT}, s{sT+1}")
    st(f"v_add_u32 v{vX}, s{sT}, v{vX}")
    st(f"v_mul_u32_u24 v{vX}, 1280, v{vX}")
    st(f"v_lshrrev_b32 v{vX+1}, 4, v{R['lane']}")
    st(f"v_lshl_add_u32 v{vX}, v{vX+1}, 3, v{vX}")
    st(f"s_mul_i32 s{sT}, s{R['c']}, 160")
    st(f"v_add_u32 v{vX}, s{sT}, v{vX}")

    def group(s):
        g = Stream()
        if s >= nst: return g
        slot = s % NSLOT
        if 4 * s + 3 < NKB:
            g(f"s_add_u32 s{sT}, s{R['w']}, {4*s}")
        else:
            g(f"s_add_u32 s{sT}, s{R['w']}, {4*s}")
            g(f"s_min_u32 s{sT}, s{sT}, {NKB-1}")
        g(f"s_mul_i32 s{sT}, s{sT}, 5120")
        g(f"s_add_u32 s{sT}, s{sT}, s{sB}")
        g(f"s_add_u32 m0, s{sM}, {slot*SLOT}")
        for jj in range(4):
            g(f"buffer_load_dwordx4 v{vL16}, s[{sws}:{sws+3}], s{sT} offen offset:{1024*jj} lds", tag=f"G{s}")
        g(f"s_add_u32 s{sT}, s{sT}, 4096")
        g(f"s_add_u32 m0, s{sM}, {slot*SLOT + 4096}")
        g(f"buffer_load_dwordx4 v{vL16}, s[{sws}:{sws+3}], s{sT} offen lds", tag=f"G{s}")
        g(f"s_add_u32 s{sT+1}, s{sA}, {4096*s}")
        for i in range(4):
            kb = 4 * s + i
            if kb >= NKB: continue
            r = AR + 4 * (kb % NAR)
            g(f"buffer_load_dwordx4 a[{r}:{r+3}], v{vL16}, s[{sws}:{sws+3}], s{sT+1} offen offset:{1024*i}", tag=f"G{s}")
        return g

    for s in range(DIST):
        st.extend(group(s))
        if s == 0:
            for jj in range(5):
                st(f"buffer_load_dwordx2 v[{RES+2*jj}:{RES+2*jj+1}], v{vX}, s[{sx}:{sx+3}], 0 offen offset:{32*jj}", tag="res")

    tot = NKB * 5
    def frag(i): return FR + 4 * (i % NFR)
    def read(i):
        kb, jj = divmod(i, 5)
        s = kb // 4; slot = s % NSLOT
        off = slot * SLOT + (kb & 3) * 5120 + jj * 1024
        base = vRd
        if off >= 3 * SLOT: base = vRd2; off -= 3 * SLOT
        r = frag(i)
        if kb % 4 == 0 and jj == 0:
            st.wait(vm=f"G{s}")
            st("s_barrier")
            pend.append(s + DIST)
        st(f"ds_read_b128 v[{r}:{r+3}], v{base} offset:{off}", tag=f"F{i}")
    pend = []
    gq = []
    for i in range(LOOK): read(i)
    for i in range(tot):
        kb, jj = divmod(i, 5)
        while pend:
            gq.extend(group(pend.pop(0)).ops)
        st.wait(lg=f"F{i}")
        r = frag(i); a = AR + 4 * (kb % NAR); acc = ACC + 4 * jj
        cin = "0" if kb == 0 else f"v[{acc}:{acc+3}]"
        st(f"v_mfma_f32_16x16x32_bf16 v[{acc}:{acc+3}], v[{r}:{r+3}], a[{a}:{a+3}], {cin}")
        while gq:
            op = gq.pop(0); st.ops.append(op)
            if op.kind == "vmem": break
        if i + LOOK < tot: read(i + LOOK)
    assert not gq and not pend or all(p >= nst for p in pend)
    st.wait(vm="res")
    T = R["tmp"]
    for jj in range(5):
        acc = ACC + 4 * jj; r = RES + 2 * jj
        st(f"v_lshlrev_b32 v{T}, 16, v{r}")
        st(f"v_and_b32 v{T+1}, 0xffff0000, v{r}")
        st(f"v_lshlrev_b32 v{T+2}, 16, v{r+1}")
        st(f"v_and_b32 v{T+3}, 0xffff0000, v{r+1}")
        for i in range(4):
            st(f"v_add_f32 v{T+i}, v{T+i}, v{acc+i}")
        st(f"v_cvt_pk_bf16_f32 v{r}, v{T}, v{T+1}")
        st(f"v_cvt_pk_bf16_f32 v{r+1}, v{T+2}, v{T+3}")
        st(f"buffer_store_dwordx2 v[{r}:{r+1}], v{vX}, s[{so}:{so+3}], 0 offen offset:{32*jj}")

def gen_k2(name="out_kernel"):
    st = Stream()
    L = name
    st("s_cmp_ge_u32 s2, 256")
    st(f"s_cbranch_scc1 {L}_end")
    st(f"s_load_dwordx2 s[4:5], s[0:1], {KA_X}")
    st(f"s_load_dwordx2 s[6:7], s[0:1], {KA_OUT}")
    st(f"s_load_dwordx2 s[12:13], s[0:1], {KA_WS}")
    st("v_lshrrev_b32 v1, 6, v0")
    st("v_and_b32 v2, 63, v0")
    st("v_readfirstlane_b32 s14, v1")
    st("s_and_b32 s28, s2, 7")
    st("s_lshr_b32 s29, s2, 3")
    st("s_and_b32 s30, s28, 1")
    st("s_lshl_b32 s30, s30, 2")
    st("s_and_b32 s31, s29, 3")
    st("s_add_u32 s30, s30, s31")
    st("s_lshr_b32 s31, s28, 1")
    st("s_lshl_b32 s31, s31, 3")
    st("s_lshr_b32 s29, s29, 2")
    st("s_add_u32 s31, s31, s29")
    st.waitall(vm=False)
    srd(st, 16, 4, X_BYTES)
    srd(st, 20, 12, WS_USED)
    srd(st, 24, 6, OUT_BYTES)
    R = dict(ws=20, x=16, out=24, c=30, rho=31, w=14, lane=2, vl16=3, vrd=4, vrd2=5, vxaddr=6,
             acc=16, frag=40, aring=0, sA=32, sB=33, sM=34, sT=36, res=64, tmp=80)
    s2_body(st, L, R)
    st.label(f"{L}_end")
    st("s_endpgm")
    txt, npad = kernel_text(name, st)
    return txt, descriptor(name, 256, 128), dict(grid=256, block=256, lds=6*SLOT)
```

```python
import sys
from build import *
from k0 import gen_k0
from k1 import gen_k1
from k2 import gen_k2
ks = []
for nm, g in (("prep_kernel", gen_k0), ("proj_kernel", gen_k1), ("out_kernel", gen_k2)):
    t, d, l = g(nm); ks.append((nm, t, d, l))
build(ks, sys.argv[1] if len(sys.argv) > 1 else "out_all.s")
```

```python
import re

class Op:
    __slots__ = ("text", "kind", "tag", "vm_tags", "lg_tags", "note")
    def __init__(self, text, kind="", tag=None, vm_tags=None, lg_tags=None, note=None):
        self.text = text; self.kind = kind; self.tag = tag
        self.vm_tags = vm_tags; self.lg_tags = lg_tags; self.note = note
    def __repr__(self): return f"Op({self.text!r},{self.kind},{self.tag})"

def classify(text):
    m = text.split()[0]
    if m.endswith(":"): return "label"
    if m.startswith("v_mfma") or m.startswith("v_smfmac"): return "mfma"
    if m.startswith("ds_"): return "ds"
    if m.startswith("buffer_wbl2") or m.startswith("buffer_inv"): return "vmem"
    if m.startswith("buffer_") or m.startswith("global_"): return "vmem"
    if m.startswith("s_load") or m.startswith("s_memtime") or m.startswith("s_memrealtime"): return "smem"
    if m.startswith("s_waitcnt"): return "waitraw"
    if m.startswith("s_cbranch") or m.startswith("s_branch") or m.startswith("s_endpgm") or m.startswith("s_setpc"): return "branch"
    if m.startswith("s_"): return "salu"
    if m.startswith("v_"): return "valu"
    if m.startswith("."): return "dir"
    raise ValueError("cannot classify " + text)

class Stream:
    def __init__(self): self.ops = []
    def __call__(self, text, tag=None, note=None):
        for line in text.split("\n"):
            line = line.strip()
            if not line or line.startswith(";"): continue
            self.ops.append(Op(line, classify(line), tag, note=note))
        return self
    def wait(self, vm=None, lg=None):
        if isinstance(vm, str): vm = [vm]
        if isinstance(lg, str): lg = [lg]
        self.ops.append(Op("<wait>", "wait", vm_tags=vm, lg_tags=lg))
        return self
    def waitall(self, vm=True, lg=True):
        parts = []
        if vm: parts.append("vmcnt(0)")
        if lg: parts.append("lgkmcnt(0)")
        self.ops.append(Op("s_waitcnt " + " ".join(parts), "waitraw"))
        return self
    def extend(self, other):
        self.ops.extend(other.ops if isinstance(other, Stream) else other)
        return self
    def mark(self, name):
        self.ops.append(Op("<mark>", "mark", tag=name)); return self
    def waitmark(self, name):
        self.ops.append(Op("<waitmark>", "waitmark", tag=name)); return self
    def label(self, name):
        self.ops.append(Op(name + ":", "label")); return self

def resolve_waits(ops):
    out = []
    vmq = []
    lgq = []
    marks = {}
    issued = 0
    for op in ops:
        if op.kind == "vmem" and op.note != "cond": issued += 1
        if op.kind == "mark":
            marks[op.tag] = issued; continue
        if op.kind == "waitmark":
            n = min(issued - marks[op.tag], 63)
            out.append(Op(f"s_waitcnt vmcnt({n})", "waitraw", note="cond")); continue
        if op.note == "cond":
            out.append(op)
        elif op.kind == "vmem":
            vmq.append(op.tag); out.append(op)
        elif op.kind == "ds":
            lgq.append(op.tag); out.append(op)
        elif op.kind == "smem":
            lgq.append("<smem>"); out.append(op)
        elif op.kind == "waitraw":
            m = re.search(r"vmcnt\((\d+)\)", op.text)
            if m:
                n = int(m.group(1)); vmq = vmq[len(vmq) - n:] if n < len(vmq) else vmq
                if n == 0: vmq = []
            m = re.search(r"lgkmcnt\((\d+)\)", op.text)
            if m:
                n = int(m.group(1)); lgq = lgq[len(lgq) - n:] if n < len(lgq) else lgq
                if n == 0: lgq = []
            out.append(op)
        elif op.kind == "wait":
            parts = []
            if op.vm_tags is not None:
                idx = [i for i, t in enumerate(vmq) if t in op.vm_tags]
                if idx:
                    n = len(vmq) - 1 - idx[-1]
                    n = min(n, 63)
                    parts.append(f"vmcnt({n})")
                    vmq = vmq[len(vmq) - n:] if n > 0 else []
            if op.lg_tags is not None:
                idx = [i for i, t in enumerate(lgq) if t in op.lg_tags]
                if idx:
                    n = len(lgq) - 1 - idx[-1]
                    if "<smem>" in lgq: n = 0
                    n = min(n, 15)
                    parts.append(f"lgkmcnt({n})")
                    lgq = lgq[len(lgq) - n:] if n > 0 else []
            if parts:
                out.append(Op("s_waitcnt " + " ".join(parts), "waitraw"))
        else:
            out.append(op)
    return out

_REG = re.compile(r"\b([vas])(\d+)\b|\b([vas])\[(\d+):(\d+)\]")
def regs_of(tok):
    tok = tok.strip()
    neg = tok.lstrip("-").replace("abs(", "").replace(")", "").replace("|", "")
    m = re.fullmatch(r"([vas])(\d+)", neg)
    if m: return {(m.group(1), int(m.group(2)))}
    m = re.fullmatch(r"([vas])\[(\d+):(\d+)\]", neg)
    if m: return {(m.group(1), i) for i in range(int(m.group(2)), int(m.group(3)) + 1)}
    if neg == "vcc": return {("s", "vcc")}
    if neg == "exec": return {("s", "exec")}
    if neg == "m0": return {("s", "m0")}
    return set()

TRANS = ("v_exp_f32", "v_log_f32", "v_rcp_f32", "v_rsq_f32", "v_sqrt_f32", "v_sin_f32", "v_cos_f32")

def operands(text):
    parts = text.split(None, 1)
    if len(parts) < 2: return parts[0], []
    rest = parts[1]
    toks = []
    depth = 0; cur = ""
    for ch in rest:
        if ch == "[": depth += 1
        if ch == "]": depth -= 1
        if ch == "," and depth == 0:
            toks.append(cur.strip()); cur = ""
        else:
            cur += ch
    toks.append(cur.strip())
    last = toks[-1].split()
    mods = []
    if last:
        toks[-1] = last[0]; mods = last[1:]
    return parts[0], toks, mods

def rw_sets(op):
    r = operands(op.text)
    if len(r) == 2: return set(), set()
    mn, toks, mods = r
    R = set(); W = set()
    k = op.kind
    if k == "mfma":
        W |= regs_of(toks[0])
        for t in toks[1:4]: R |= regs_of(t)
    elif k == "valu":
        if mn.startswith("v_cmp"):
            W |= regs_of(toks[0])
            for t in toks[1:]: R |= regs_of(t)
        elif mn.startswith("v_permlane16_swap") or mn.startswith("v_permlane32_swap"):
            W |= regs_of(toks[0]) | regs_of(toks[1]); R |= W
        elif mn.startswith("v_swap"):
            W |= regs_of(toks[0]) | regs_of(toks[1]); R |= W
        else:
            W |= regs_of(toks[0])
            start = 1
            if "_co_" in mn:
                W |= regs_of(toks[1]); start = 2
            for t in toks[start:]: R |= regs_of(t)
            if mn.startswith("v_fmac") or mn.startswith("v_dot2c") or mn.startswith("v_writelane") or "_dpp" in mn or any("row_" in m or "quad_perm" in m for m in mods):
                R |= regs_of(toks[0])
            if mn.startswith("v_cndmask") and len(toks) == 3: R.add(("s", "vcc"))
    elif k == "ds":
        if mn.startswith("ds_read") or mn.startswith("ds_bpermute") or mn.startswith("ds_swizzle"):
            W |= regs_of(toks[0])
            for t in toks[1:]: R |= regs_of(t)
        else:
            for t in toks: R |= regs_of(t)
    elif k == "vmem":
        if mn.startswith("buffer_wbl2") or mn.startswith("buffer_inv"):
            pass
        elif mn.startswith("buffer_load"):
            if "lds" in mods:
                for t in toks: R |= regs_of(t)
                R.add(("s", "m0"))
            else:
                W |= regs_of(toks[0])
                for t in toks[1:]: R |= regs_of(t)
        elif mn.startswith("buffer_store") or mn.startswith("buffer_atomic"):
            for t in toks: R |= regs_of(t)
            if mn.startswith("buffer_atomic") and "sc0" in mods: W |= regs_of(toks[0])
        elif mn.startswith("global_load"):
            W |= regs_of(toks[0])
            for t in toks[1:]: R |= regs_of(t)
        else:
            for t in toks: R |= regs_of(t)
    elif k == "salu":
        if mn.startswith("s_cmp") or mn.startswith("s_bitcmp") or mn in ("s_barrier", "s_nop", "s_sleep", "s_setprio"):
            for t in toks: R |= regs_of(t)
        else:
            W |= regs_of(toks[0])
            for t in toks[1:]: R |= regs_of(t)
            if "saveexec" in mn:
                W.add(("s", "exec")); R.add(("s", "exec"))
    elif k == "smem":
        W |= regs_of(toks[0])
        for t in toks[1:]: R |= regs_of(t)
    return R, W

def nstates(op):
    if op.kind in ("label", "dir"): return 0
    if op.text.startswith("s_nop"):
        return int(op.text.split()[1]) + 1
    return 1

def mfma_passes(text):
    if "32x32x16" in text or "32x32x8" in text: return 8
    if "16x16x32" in text or "16x16x16" in text: return 4
    if "16x16x64" in text: return 8
    if "32x32x32" in text: return 16
    raise ValueError(text)

def is_v(rs): return {r for r in rs if r[0] in "va"}
def is_s(rs): return {r for r in rs if r[0] == "s"}

def required_distance(p, pR, pW, c, cR, cW):
    need = 0
    pm = p.text.split()[0]; cm = c.text.split()[0]
    if p.kind == "valu":
        vw = is_v(pW); sw = is_s(pW)
        if c.kind == "mfma" and vw & cR: need = max(need, 2)
        if c.kind == "valu":
            if (cm.startswith("v_readlane") or cm.startswith("v_readfirstlane")) and vw & cR: need = max(need, 1)
            if (cm.startswith("v_permlane")) and vw & cR: need = max(need, 2)
            if ("dpp" in c.text or "row_" in c.text or "quad_perm" in c.text) and vw & cR: need = max(need, 2)
            if sw & cR: need = max(need, 2)
            if (cm.startswith("v_readlane") or cm.startswith("v_writelane")) and sw & cR: need = max(need, 4)
            if pm.split("_e")[0] in TRANS and vw & cR and cm.split("_e")[0] not in TRANS: need = max(need, 1)
            if pm.split("_e")[0] in TRANS and vw & cR: need = max(need, 1)
            if "sdwa" in p.text and vw & (cR | cW): need = max(need, 1)
        if pm.startswith("v_dot"):
            if cm == pm:
                _, ct, _m = operands(c.text)
                ab = set()
                for t in ct[1:3]: ab |= regs_of(t)
                if vw & ab: need = max(need, 3)
            elif vw & (cR | cW): need = max(need, 3)
        if c.kind == "vmem" and sw & cR: need = max(need, 5)
        if c.kind == "salu" and sw & cR: need = max(need, 4)
        if c.kind == "branch" and ("vcc" in c.text) and ("s", "vcc") in sw: need = max(need, 5)
    elif p.kind == "mfma":
        n = mfma_passes(p.text)
        big = {4: 8, 8: 12, 16: 20}[n]
        ov = {4: 6, 8: 10, 16: 18}[n]
        if c.kind == "mfma":
            _, ct, _m = operands(c.text)
            cC = regs_of(ct[3]); cAB = regs_of(ct[1]) | regs_of(ct[2])
            if pW & cAB: need = max(need, big)
            if pW & cC:
                same = (pW == cC and pm == cm)
                if not same: need = max(need, ov)
            elif pW & cW and not (pW & cC):
                need = max(need, ov)
        elif c.kind in ("valu", "ds", "vmem"):
            if pW & (cR | cW): need = max(need, big)
            _, pt, _m = operands(p.text)
            pC = regs_of(pt[3])
            if c.kind == "valu" and pC & cW: need = max(need, {4: 3, 8: 7, 16: 15}[n])
    elif p.kind == "salu":
        if ("s", "m0") in pW and c.kind == "vmem" and ("s", "m0") in cR: need = max(need, 1)
        if ("s", "m0") in pW and c.kind == "ds" and ("addtid" in cm): need = max(need, 1)
    elif p.kind == "vmem":
        if ("store" in pm or "atomic" in pm) and ("x4" in pm or "x3" in pm):
            _, pt, _m = operands(p.text)
            data = regs_of(pt[0]) if pm.startswith("buffer") else regs_of(pt[1])
            if c.kind == "valu" and data & cW: need = max(need, 2)
            elif data & cW: need = max(need, 1)
    return need

MAXD = 20
def pad_hazards(ops, verbose=False):
    out = []
    info = []
    npad = 0
    for op in ops:
        if op.kind in ("label", "dir"):
            out.append(op); info.append((set(), set())); continue
        R, W = rw_sets(op)
        need_pad = 0
        dist = 0
        j = len(out) - 1
        while j >= 0 and dist < MAXD:
            p = out[j]
            if p.kind not in ("label", "dir"):
                pR, pW = info[j]
                n = required_distance(p, pR, pW, op, R, W)
                if n > dist: need_pad = max(need_pad, n - dist)
                dist += nstates(p)
            j -= 1
        while need_pad > 0:
            k = min(need_pad, 16)
            nop = Op(f"s_nop {k-1}", "salu")
            out.append(nop); info.append((set(), set()))
            need_pad -= k; npad += k
        out.append(op); info.append((R, W))
    return out, npad

def interleave(main, fillers, per_slot, slot_pred=None, start=0):
    out = []
    fi = 0; ns = 0
    for op in main:
        if op.kind == "slot":
            if ns >= start:
                k = per_slot(ns) if callable(per_slot) else per_slot
                for _ in range(k):
                    if fi < len(fillers):
                        out.extend(fillers[fi]); fi += 1
            ns += 1
        else:
            out.append(op)
    return out, fillers[fi:]

def finalize(ops):
    ops = [o for o in ops if o.kind != "slot"]
    ops = resolve_waits(ops)
    ops, npad = pad_hazards(ops)
    return "\n".join(("" if o.kind == "label" else "    ") + o.text for o in ops), npad
```

```python
from asmlib import *

NAME = "parallel_sum__linear_attn_block__dense_activation_relu__prompt"

KA_X, KA_WQKV, KA_WO, KA_BX, KA_W1, KA_W2, KA_OUT, KA_DBG, KA_WS = 0, 8, 16, 24, 32, 40, 48, 56, 64

S, D, DFF = 2048, 640, 1728
X_BYTES = S * D * 2
WQKV_BYTES = D * 3 * D * 2
WO_BYTES = D * D * 2
W1_BYTES = D * DFF * 2
W2_BYTES = DFF * D * 2
OUT_BYTES = S * D * 2

XN_OFF = 0x0
HF_OFF = 0x280000
W2F_OFF = 0xBC0000
KV_OFF = 0xEA8000
FL_OFF = 0xED8000
FL_KVC, FL_HB, FL_HA, FL_OB, FL_W2 = 0, 8, 24, 40, 56
WS_USED = 0xEE0000
NKB = 74

def srd(st, base, lo, size):
    st(f"s_mov_b32 s{base}, s{lo}")
    st(f"s_mov_b32 s{base+1}, s{lo+1}")
    st(f"s_mov_b32 s{base+2}, {size}")
    st(f"s_mov_b32 s{base+3}, 0x20000")

def kernel_text(name, st):
    body, npad = finalize(st.ops)
    return (f".globl {name}\n.p2align 8\n.type {name},@function\n{name}:\n" + body + "\n"), npad

def descriptor(name, vgpr, accum, sgpr=102):
    return f""".p2align 6
.amdhsa_kernel {name}
  .amdhsa_next_free_vgpr {vgpr}
  .amdhsa_next_free_sgpr {sgpr}
  .amdhsa_accum_offset {accum}
  .amdhsa_group_segment_fixed_size 0
  .amdhsa_kernarg_size 72
  .amdhsa_user_sgpr_count 2
  .amdhsa_user_sgpr_kernarg_segment_ptr 1
  .amdhsa_system_sgpr_workgroup_id_x 1
  .amdhsa_float_denorm_mode_32 3
.end_amdhsa_kernel
"""


PROF = False
PROF_OFF = 0xEB8000
S_STAMP = 80
STAMP_SET = "main"
def stamp(st, i, group="main"):
    if PROF and (group == STAMP_SET or i == 0): st(f"s_memrealtime s[{S_STAMP+2*i}:{S_STAMP+2*i+1}]")
def stamp_flush(st, kidx, ws_srd, wave_sgpr, n):
    if not PROF: return
    st("s_waitcnt vmcnt(0) lgkmcnt(0)")
    st(f"s_memrealtime s[{S_STAMP+2*n}:{S_STAMP+2*n+1}]")
    st("s_waitcnt lgkmcnt(0)")
    st("s_lshl_b32 s78, s2, 2")
    st(f"s_add_u32 s78, s78, s{wave_sgpr}")
    st("s_lshl_b32 s78, s78, 5")
    st(f"s_add_u32 s78, s78, {PROF_OFF + kidx*32768}")
    st("s_mov_b64 exec, 1")
    st("v_mov_b32 v1, 0")
    for i in range(n + 1):
        st(f"v_mov_b32 v0, s{S_STAMP+2*i}")
        st(f"buffer_store_dword v0, v1, s[{ws_srd}:{ws_srd+3}], s78 offen offset:{4*i}")
        st("s_nop 1")
```

```python
from common import *
import s2b

SLOT = 20480
NSLOT, DIST, LOOK = 6, 4, 4
NFR = LOOK + 2
KVP = NSLOT * SLOT
KVP_PITCH = 336
K1_LDS = 163840
FT = KVP + 16384
LOG2E = 0x3fb8aa3b
EPS6 = 0x358637bd

for c in range(320): assert (c * 3277) >> 16 == c // 20
for c in range(192): assert (c * 5462) >> 16 == c // 12
for c in range(512): assert (c * 625) >> 16 == c // 105
for c in range(105): assert (c * 13108) >> 16 == c // 5
for c in range(1024): assert (c * 5669) >> 22 == c // 740

V_LANE = 2
V_D1 = 3
V_D2 = 8
V_H = 11
V_RS, V_C = 12, 13
V_T1 = 14
FR = 16
TMP = 40
V_T2 = 88
V_KVA = 90
V_Z = 91
V_W = 91
V_FLAG = 95
V_FOFF = 1
X = 96
ACC1 = 0
ACC2 = 80
S_X = 4; S_FMT = 8
S_WAVE = 14; S_G = 15; S_R = 16; S_XB = 17; S_M1 = 18; S_M2 = 19
S_WS = 20; S_W1 = 24; S_W2 = 28; S_DBG = 32
S_K1 = 36; S_K2 = 37; S_H = 38; S_XM = 39; S_T = 40
S_O = 50
S_EPS = 56; S_L2E = 57; S_KV = 58; S_HALF = 60
KA = 64
P_X, P_WQKV, P_WO, P_W1, P_W2, P_OUT, P_DBG = 64, 66, 68, 72, 74, 76, 78
P_WS = 12
ST_FLAGS = ""

def one(txt, **kw):
    s = Stream(); s(txt, **kw); return s.ops

def relu_pack_store(acc, P, T, sbase, imm):
    G = []
    for p in range(8):
        t = T + 2 * (p & 1)
        G.append(one(f"v_accvgpr_read_b32 v{t}, a{acc+2*p}"))
        G.append(one(f"v_accvgpr_read_b32 v{t+1}, a{acc+2*p+1}"))
        G.append(one(f"v_cvt_pk_bf16_f32 v{P+p}, v{t}, v{t+1}"))
        G.append(one(f"v_pk_max_i16 v{P+p}, v{P+p}, 0"))
    for u in range(2):
        G.append(one(f"buffer_store_dwordx4 v[{P+4*u}:{P+4*u+3}], v{V_H}, s[{S_WS}:{S_WS+3}], s{sbase} offen offset:{imm+512*u}{ST_FLAGS}", tag="hst"))
    return G

def phi_groups(regs, tbase, ntmp=8):
    G = []
    n = len(regs)
    for i0 in range(0, n, ntmp):
        blk = regs[i0:i0+ntmp]
        for k, r in enumerate(blk): G.append(one(f"v_min_f32 v{tbase+k}, 0, v{r}"))
        for k, r in enumerate(blk): G.append(one(f"v_mul_f32 v{tbase+k}, s{S_L2E}, v{tbase+k}"))
        for k, r in enumerate(blk): G.append(one(f"v_exp_f32 v{tbase+k}, v{tbase+k}"))
        for k, r in enumerate(blk): G.append(one(f"v_max_f32 v{r}, 0, v{r}"))
        for k, r in enumerate(blk): G.append(one(f"v_add_f32 v{r}, s{S_EPS}, v{r}"))
        for k, r in enumerate(blk): G.append(one(f"v_add_f32 v{r}, v{r}, v{tbase+k}"))
    return G

def norm_groups(t):
    G = []
    for pr in range(2):
        r0, r1 = X + 4 * t + 2 * pr, X + 4 * t + 2 * pr + 1
        a = TMP
        G.append(one(f"v_lshlrev_b32 v{a}, 16, v{r0}"))
        G.append(one(f"v_and_b32 v{a+1}, 0xffff0000, v{r0}"))
        G.append(one(f"v_lshlrev_b32 v{a+2}, 16, v{r1}"))
        G.append(one(f"v_and_b32 v{a+3}, 0xffff0000, v{r1}"))
        for k in range(4):
            G.append(one(f"v_fma_f32 v{a+k}, v{a+k}, v{V_RS}, v{V_C}"))
        G.append(one(f"v_cvt_pk_bf16_f32 v{r0}, v{a}, v{a+1}"))
        G.append(one(f"v_cvt_pk_bf16_f32 v{r1}, v{a+2}, v{a+3}"))
    return G

def flush(st, groups):
    for g in groups: st.ops.extend(g)

def head(x): return x // 20

class Passes:
    def __init__(self, st, typ):
        self.st = st; self.typ = typ
        self.nb2 = 2 if typ == "A" else 3
        self.items = [(1, t, b) for t in range(40) for b in range(5)] + [(2, t, b) for t in range(40) for b in range(self.nb2)]
        self.pend = []; self.gq = []
        self.barriered = set()
        self.after_barrier = {}
        self.before_barrier = {}
    def group(self, s):
        g = Stream()
        if s >= 20: return g
        slot = s % NSLOT
        if s < 10:
            g(f"s_add_u32 s{S_T}, s{S_K1}, {s * 64 * (3840 if self.typ == 'A' else 3456)}")
            for i in range(5):
                g(f"s_add_u32 m0, s{S_M1}, {slot*SLOT + 1024*i}")
                g(f"buffer_load_dwordx4 v{V_D1+i}, s[{S_W1}:{S_W1+3}], s{S_T} offen lds", tag=f"G{s}")
        else:
            g(f"s_add_u32 s{S_T}, s{S_K2}, {(s-10) * 64 * (3456 if self.typ == 'A' else 3840)}")
            for i in range(3):
                g(f"s_add_u32 m0, s{S_M2}, {slot*SLOT + 1024*i}")
                g(f"buffer_load_dwordx4 v{V_D2+i}, s[{S_W2}:{S_W2+3}], s{S_T} offen lds", tag=f"G{s}")
        return g
    def frag(self, i): return FR + 4 * (i % NFR)
    def read(self, i):
        st = self.st
        p, t, b = self.items[i]
        s = (0 if p == 1 else 10) + t // 4
        slot = s % NSLOT
        pitch = 320 if p == 1 else 192
        off = slot * SLOT + (t & 3) * 16 * pitch + 64 * b
        base = V_T1 if p == 1 else V_T2
        if off >= 3 * SLOT: base += 1; off -= 3 * SLOT
        r = self.frag(i)
        if t % 4 == 0 and b == 0 and s not in self.barriered:
            self.barriered.add(s)
            st.wait(vm=f"G{s}")
            if s in self.before_barrier: self.before_barrier[s](st)
            st("s_barrier")
            if s == 0: self.pend.append(3)
            self.pend.append(s + DIST)
            if s in self.after_barrier: self.after_barrier[s](st)
        st(f"ds_read_b64_tr_b16 v[{r}:{r+1}], v{base} offset:{off}", tag=f"F{i}")
        st(f"ds_read_b64_tr_b16 v[{r+2}:{r+3}], v{base} offset:{off + 4*pitch}", tag=f"F{i}")
    def start(self, i0):
        for i in range(i0, i0 + LOOK): self.read(i)
    def run(self, lo, hi, fillers=None, per_slot=2, lookahead_to=None, vm_takes_slot=True):
        st = self.st
        fillers = fillers if fillers is not None else []
        lim = lookahead_to if lookahead_to is not None else len(self.items)
        for i in range(lo, hi):
            p, t, b = self.items[i]
            while self.pend:
                self.gq.extend(self.group(self.pend.pop(0)).ops)
            st.wait(lg=f"F{i}")
            r = self.frag(i)
            acc = (ACC1 if p == 1 else ACC2) + 16 * b
            cin = "0" if t == 0 else f"a[{acc}:{acc+15}]"
            W = f"v[{r}:{r+3}]"; Xr = f"v[{X+4*t}:{X+4*t+3}]"
            if p == 1 and self.typ == "A":
                st(f"v_mfma_f32_32x32x16_bf16 a[{acc}:{acc+15}], {Xr}, {W}, {cin}")
            else:
                st(f"v_mfma_f32_32x32x16_bf16 a[{acc}:{acc+15}], {W}, {Xr}, {cin}")
            used = 0
            while self.gq:
                op = self.gq.pop(0); st.ops.append(op)
                if op.kind == "vmem":
                    used = 1 if vm_takes_slot else 0
                    break
            if i + LOOK < lim: self.read(i + LOOK)
            for _ in range(per_slot - used):
                if fillers: st.ops.extend(fillers.pop(0))
        return fillers
    def drain_groups(self):
        while self.pend:
            self.gq.extend(self.group(self.pend.pop(0)).ops)
        self.st.ops.extend(self.gq); self.gq = []

V_FTGT = TMP + 28
def _flag_addr(st, spec):
    lines, stride, lanes, extra = spec
    for ln in lines: st(ln)
    if lanes == 1:
        st(f"v_mov_b32 v{V_FOFF}, s{S_T}")
    else:
        st(f"v_mul_u32_u24 v{V_FOFF}, {stride}, v{V_LANE}")
        st(f"v_add_u32 v{V_FOFF}, s{S_T}, v{V_FOFF}")
        if extra:
            for ln in extra: st(ln)
            st(f"v_mov_b32 v{V_FTGT}, s{S_T+1}")
            st(f"v_cmp_eq_u32 vcc, {lanes-1}, v{V_LANE}")
            st(f"v_cndmask_b32 v{V_FOFF}, v{V_FOFF}, v{V_FTGT}, vcc")

def preload(st, L, name, spec, srd):
    st(f"s_cmp_lg_u32 s{S_WAVE}, 0")
    st(f"s_cbranch_scc1 {L}_{name}_pre")
    _flag_addr(st, spec)
    lanes = spec[2]
    st(f"s_mov_b64 exec, {(1 << lanes) - 1}")
    st(f"buffer_load_dword v{V_FLAG}, v{V_FOFF}, s[{srd}:{srd+3}], 0 offen sc0 sc1", note="cond")
    st("s_mov_b64 exec, -1")
    st.label(f"{L}_{name}_pre")
    st.mark(name)

def poll(st, L, name, spec, targets, srd, preloaded=None):
    lanes = spec[2]
    mask = (1 << lanes) - 1
    st(f"s_cmp_lg_u32 s{S_WAVE}, 0")
    st(f"s_cbranch_scc1 {L}_{name}_ok")
    if isinstance(targets, tuple):
        st(f"v_mov_b32 v{V_FTGT}, {targets[0]}")
        st(f"v_mov_b32 v{V_FTGT+1}, {targets[1]}")
        st(f"v_cmp_eq_u32 vcc, {lanes-1}, v{V_LANE}")
        st(f"v_cndmask_b32 v{V_FTGT}, v{V_FTGT}, v{V_FTGT+1}, vcc")
    else:
        st(f"v_mov_b32 v{V_FTGT}, {targets}")
    st(f"s_mov_b64 exec, {mask}")
    if preloaded:
        st.waitmark(preloaded)
        st(f"v_cmp_ge_u32 vcc, v{V_FLAG}, v{V_FTGT}")
        st(f"s_cmp_eq_u64 vcc, {mask}")
        st(f"s_cbranch_scc1 {L}_{name}_done")
    st(f"s_mov_b32 s{S_T+2}, 0")
    st.label(f"{L}_{name}_spin")
    st(f"buffer_load_dword v{V_FLAG}, v{V_FOFF}, s[{srd}:{srd+3}], 0 offen sc0 sc1", note="cond")
    st("s_waitcnt vmcnt(0)", note="cond")
    st(f"v_cmp_ge_u32 vcc, v{V_FLAG}, v{V_FTGT}")
    st(f"s_add_u32 s{S_T+2}, s{S_T+2}, 1")
    st(f"s_cmp_ge_u32 s{S_T+2}, 0x40000")
    st(f"s_cbranch_scc1 {L}_{name}_done")
    st(f"s_cmp_eq_u64 vcc, {mask}")
    st(f"s_cbranch_scc0 {L}_{name}_spin")
    st.label(f"{L}_{name}_done")
    st("s_mov_b64 exec, -1")
    st.label(f"{L}_{name}_ok")

def flag_off(line_base, sreg):
    return [f"s_lshl_b32 s{S_T}, s{sreg}, 7", f"s_add_u32 s{S_T}, s{S_T}, {FL_OFF + 128*line_base}"]
def flag_spec(line_base, sreg): return (flag_off(line_base, sreg), 0, 1, None)

INIT_SPEC = ([f"s_and_b32 s{S_T}, s2, 3", f"s_lshl_b32 s{S_T}, s{S_T}, 6"], 0, 1, None)
START_SPEC = ([f"s_mov_b32 s{S_T}, {FL_OFF + 128*FL_W2}"], 128, 9,
              [f"s_lshl_b32 s{S_T+1}, s{S_R}, 7", f"s_add_u32 s{S_T+1}, s{S_T+1}, {FL_OFF + 128*FL_HB}"])

def signal(st, L, name, off_lines, srd, lanes=1, lane_stride=0):
    st(f"s_cmp_lg_u32 s{S_WAVE}, 0")
    st(f"s_cbranch_scc1 {L}_{name}_sig")
    st(f"v_mov_b32 v{TMP+4}, 1")
    for ln in off_lines: st(ln)
    if lane_stride:
        st(f"v_mul_u32_u24 v{TMP+5}, {lane_stride}, v{V_LANE}")
        st(f"v_add_u32 v{TMP+5}, s{S_T}, v{TMP+5}")
    else:
        st(f"v_mov_b32 v{TMP+5}, s{S_T}")
    st(f"s_mov_b64 exec, {(1 << lanes) - 1}")
    st(f"buffer_atomic_add v{TMP+4}, v{TMP+5}, s[{srd}:{srd+3}], 0 offen", note="cond")
    st("s_mov_b64 exec, -1")
    st.label(f"{L}_{name}_sig")

def kv_epilogue_A(st, L):
    PK = [TMP, TMP + 8, TMP + 16]; VB = [TMP + 24, TMP + 32, TMP + 40]
    VAL = FR; T = FR + 16
    for vb, b in ((0, 2), (1, 3), (2, 4)):
        a = ACC1 + 16 * b
        for i in range(16): st(f"v_accvgpr_read_b32 v{VAL+i}, a{a+i}")
        for p in range(8):
            st(f"v_cvt_pk_bf16_f32 v{VB[vb]+p}, v{VAL+2*p}, v{VAL+2*p+1}")
    st(f"v_mov_b32 v{T}, 0x3f803f80")
    for p in range(8):
        st(f"v_cndmask_b32 v{VB[0]+p}, v{VB[0]+p}, v{T}, s[{S_HALF+2}:{S_HALF+3}]")
    for kb in range(3):
        a = ACC1 + 16 * kb
        for i in range(16): st(f"v_accvgpr_read_b32 v{VAL+i}, a{a+i}")
        flush(st, phi_groups([VAL + i for i in range(16)], T, 8))
        for p in range(8):
            st(f"v_cvt_pk_bf16_f32 v{PK[kb]+p}, v{VAL+2*p}, v{VAL+2*p+1}")
    stamp(st, 4)
    tiles = [(0, 0), (0, 1), (1, 1), (1, 2), (2, 2), (1, 0), (2, 0)]
    DT = [16 * i for i in range(7)]
    for tau in range(2):
        for n, (kd, ve) in enumerate(tiles):
            d = DT[n]
            cin = "0" if tau == 0 else f"a[{d}:{d+15}]"
            st(f"v_mfma_f32_32x32x16_bf16 a[{d}:{d+15}], v[{PK[kd]+4*tau}:{PK[kd]+4*tau+3}], v[{VB[ve]+4*tau}:{VB[ve]+4*tau+3}], {cin}")
    eoff = {0: -16, 1: 16, 2: 48}
    def setexec(mask):
        st(f"s_mov_b32 exec_lo, 0x{mask & 0xffffffff:x}")
        st(f"s_mov_b32 exec_hi, 0x{mask >> 32:x}")
    for n, (kd, ve) in enumerate(tiles):
        for q in range(4):
            r = DT[n] + 4 * q
            if n < 5:
                mask = 0
                for l in range(64):
                    c, h = l & 31, l >> 5
                    d = 32 * kd + 8 * q + 4 * h
                    if d >= 80 or (ve == 0 and c < 16): continue
                    e = eoff[ve] + c
                    if e < 80 and head(e) == head(d): mask |= 1 << l
                if mask:
                    setexec(mask)
                    st(f"ds_write_b128 v{V_KVA}, a[{r}:{r+3}] offset:{80*(eoff[ve]+16) + 128*kd + 32*q}", tag="kvw")
            if ve == 0:
                byhead = {}
                for h in range(2):
                    d = 32 * kd + 8 * q + 4 * h
                    if d < 80: byhead[head(d)] = byhead.get(head(d), 0) | (1 << (32 * h))
                for hd, mask in byhead.items():
                    setexec(mask)
                    st(f"ds_write_b128 v{V_Z}, a[{r}:{r+3}] offset:{1600*hd + 1600 + 128*kd + 32*q}", tag="kvw")
    st("s_mov_b64 exec, -1")
    st.wait(lg="kvw")
    st("s_barrier")
    A0 = TMP + 4
    st(f"v_lshlrev_b32 v{A0}, 2, v0")
    st(f"v_add_u32 v{A0+1}, {KVP}, v{A0}")
    RB = FR
    for i in range(7):
        for wv in range(4):
            st(f"ds_read_b32 v{RB+4*i+wv}, v{A0+1} offset:{7168*wv + 1024*i}", tag=f"kr{i}")
    st(f"s_add_u32 s{S_T+2}, s{S_KV}, 4096")
    for i in range(7):
        st.wait(lg=f"kr{i}")
        r = RB + 4 * i
        st(f"v_add_f32 v{r}, v{r}, v{r+1}")
        st(f"v_add_f32 v{r+2}, v{r+2}, v{r+3}")
        st(f"v_add_f32 v{r}, v{r}, v{r+2}")
        sreg = S_KV if i < 4 else S_T + 2
        st(f"buffer_atomic_add_f32 v{r}, v{A0}, s[{S_WS}:{S_WS+3}], s{sreg} offen offset:{1024*(i&3)}", tag="kvat")

def o_epilogue_B(st, L):
    PQ = TMP; VAL = FR; T = FR + 16
    for b in range(3):
        a = ACC2 + 16 * b
        n = 16 if b < 2 else 8
        for i in range(n): st(f"v_accvgpr_read_b32 v{VAL+i}, a{a+i}")
        flush(st, phi_groups([VAL + i for i in range(n)], T, 8))
        for p in range(n // 2):
            st(f"v_cvt_pk_bf16_f32 v{PQ+8*b+p}, v{VAL+2*p}, v{VAL+2*p+1}")
    for i in range(4): st(f"v_mov_b32 v{VAL+i}, 0")
    st(f"v_lshlrev_b32 v{T}, 4, v0")
    st(f"v_add_u32 v{T}, {KVP}, v{T}")
    for i in range(8):
        st(f"ds_write_b128 v{T}, v[{VAL}:{VAL+3}] offset:{4096*i}", tag="z")
    stamp(st, 4)
    poll(st, L, "kv", flag_spec(FL_KVC, S_G), 16, S_WS, preloaded="kvp")
    st.wait(lg="z")
    st("s_barrier")
    stamp(st, 5)
    T = X + 128
    st(f"v_lshlrev_b32 v{T}, 4, v0")
    st(f"s_add_u32 s{S_T+2}, s{S_KV}, 4096")
    st(f"buffer_load_dwordx4 v[{T+4}:{T+7}], v{T}, s[{S_WS}:{S_WS+3}], s{S_KV} offen sc0 sc1", tag="kvl0")
    st(f"buffer_load_dwordx4 v[{T+8}:{T+11}], v{T}, s[{S_WS}:{S_WS+3}], s{S_T+2} offen sc0 sc1", tag="kvl1")
    st.wait(vm="kvl0")
    st(f"ds_write_b128 v{V_W}, v[{T+4}:{T+7}]", tag="kvw")
    st(f"ds_write_b128 v{V_W+1}, v[{T+4}:{T+7}]", tag="kvw")
    st.wait(vm="kvl1")
    st(f"ds_write_b128 v{V_W+2}, v[{T+8}:{T+11}]", tag="kvw")
    st(f"ds_write_b128 v{V_W+3}, v[{T+8}:{T+11}]", tag="kvw")
    st.wait(lg="kvw")
    st("s_barrier")
    frs = [(0, 0), (0, 1), (0, 2), (1, 1), (1, 2), (1, 3), (1, 4), (2, 0), (2, 1), (2, 2), (2, 3), (2, 4)]
    if FUSED: preload(st, L, "startp", START_SPEC, S_WS)
    AF = X; RT = X + 48; DT = X + 80
    def rd(n):
        E, tp = frs[n]
        r = RT + 8 * (n % 4)
        off = 32 * E * KVP_PITCH + 64 * tp
        st(f"ds_read_b128 v[{r}:{r+3}], v{V_KVA} offset:{off}", tag=f"kf{n}")
        st(f"ds_read_b128 v[{r+4}:{r+7}], v{V_KVA} offset:{off+32}", tag=f"kf{n}")
    for n in range(4): rd(n)
    first = {0: True, 1: True, 2: True}
    for n, (E, tp) in enumerate(frs):
        r = RT + 8 * (n % 4); f = AF + 4 * n
        st.wait(lg=f"kf{n}")
        for k in range(4):
            st(f"v_cvt_pk_bf16_f32 v{f+k}, v{r+2*k}, v{r+2*k+1}")
        if n + 4 < 12: rd(n + 4)
        q = PQ + 8 * (tp >> 1) + 4 * (tp & 1)
        d = DT + 16 * E
        cin = "0" if first[E] else f"v[{d}:{d+15}]"
        first[E] = False
        st(f"v_mfma_f32_32x32x16_bf16 v[{d}:{d+15}], v[{f}:{f+3}], v[{q}:{q+3}], {cin}")
    RD = T
    d2 = DT + 32
    for h in range(4):
        st(f"v_add_f32 v{RD+h}, s{S_EPS}, v{d2+8+h}")
    for h in range(4):
        st(f"v_rcp_f32 v{RD+h}, v{RD+h}")
    st(f"v_cndmask_b32 v{RD+4}, v{RD+0}, v{RD+1}, s[{S_HALF}:{S_HALF+1}]")
    st(f"v_cndmask_b32 v{RD+5}, v{RD+2}, v{RD+3}, s[{S_HALF}:{S_HALF+1}]")
    sel = {0: RD, 1: RD, 2: RD + 4, 3: RD + 1, 4: RD + 1, 5: RD + 2, 6: RD + 2, 7: RD + 5, 8: RD + 3, 9: RD + 3}
    for hb in range(5):
        a = DT + 16 * (hb >> 1) + 8 * (hb & 1)
        for i in range(8):
            Q = 2 * hb + (i >> 2)
            st(f"v_mul_f32 v{a+i}, v{a+i}, v{sel[Q]}")
        for p in range(4):
            st(f"v_cvt_pk_bf16_f32 v{a+p}, v{a+2*p}, v{a+2*p+1}")
        st(f"buffer_store_dwordx4 v[{a}:{a+3}], v{V_H}, s[{S_WS}:{S_WS+3}], s{S_O+hb} offen{ST_FLAGS}", tag="ost")

def fmt_setup(st, L):
    st("s_lshl_b32 s40, s2, 2")
    st(f"s_add_u32 s40, s40, s{S_WAVE}")
    st("s_mul_i32 s41, s40, 5669")
    st("s_lshr_b32 s41, s41, 22")
    st("s_mul_i32 s41, s41, 740")
    st("s_sub_u32 s40, s40, s41")
    st("s_mul_i32 s48, s40, 52429")
    st("s_lshr_b32 s48, s48, 19")
    st("s_mul_i32 s41, s48, 10")
    st("s_sub_u32 s47, s40, s41")
    st("s_lshl_b32 s45, s48, 5")
    st("s_add_u32 s46, s45, 16")
    st(f"s_mov_b32 s{S_FMT}, s{P_W2}")
    st(f"s_mov_b32 s{S_FMT+1}, s{P_W2+1}")
    st(f"s_mov_b32 s{S_FMT+2}, {W2_BYTES}")
    st(f"s_mov_b32 s{S_FMT+3}, 0x20000")
    st("s_cmp_lt_u32 s48, 54")
    st(f"s_cbranch_scc1 {L}_rows")
    st(f"s_mov_b32 s{S_FMT}, s{P_WO}")
    st(f"s_mov_b32 s{S_FMT+1}, s{P_WO+1}")
    st(f"s_mov_b32 s{S_FMT+2}, {WO_BYTES}")
    st("s_sub_u32 s42, s48, 54")
    st("s_mul_i32 s43, s42, 52429")
    st("s_lshr_b32 s43, s43, 18")
    st("s_mul_i32 s41, s43, 5")
    st("s_sub_u32 s42, s42, s41")
    st("s_mul_i32 s43, s43, 160")
    T0 = [0, 32, 64, 80, 112]; T1 = [16, 48, 144, 96, 128]
    st(f"s_mov_b32 s45, {T0[0]}")
    st(f"s_mov_b32 s46, {T1[0]}")
    for f in range(1, 5):
        st(f"s_cmp_eq_u32 s42, {f}")
        st(f"s_cselect_b32 s45, {T0[f]}, s45")
        st(f"s_cselect_b32 s46, {T1[f]}, s46")
    st("s_add_u32 s45, s45, s43")
    st("s_add_u32 s46, s46, s43")
    st.label(f"{L}_rows")
    st("s_mov_b32 s96, s45")
    st("s_mov_b32 s97, s46")
    st("s_mov_b32 s98, s47")
    st("s_mov_b32 s99, s48")

def fmt_dma(st):
    v = TMP + 20
    st(f"v_lshrrev_b32 v{v}, 3, v{V_LANE}")
    st(f"v_mul_u32_u24 v{v}, 1280, v{v}")
    st(f"v_and_b32 v{v+1}, 7, v{V_LANE}")
    st(f"v_lshl_add_u32 v{v}, v{v+1}, 4, v{v}")
    st("s_lshl_b32 s41, s98, 7")
    st(f"s_lshl_b32 s42, s{S_WAVE}, 12")
    st(f"s_add_u32 s42, s42, {FT}")
    for i in range(4):
        st(f"s_add_u32 s40, s{96 + (i >> 1)}, {8*(i&1)}")
        st("s_mul_i32 s40, s40, 1280")
        st("s_add_u32 s40, s40, s41")
        st(f"s_add_u32 m0, s42, {1024*i}")
        st(f"buffer_load_dwordx4 v{v}, s[{S_FMT}:{S_FMT+3}], s40 offen lds", tag="ft")

def fmt_finish(st):
    v = TMP + 20; l = V_LANE
    st(f"v_lshrrev_b32 v{v}, 4, v{l}")
    st(f"v_lshrrev_b32 v{v+1}, 1, v{v}")
    st(f"v_and_b32 v{v}, 1, v{v}")
    st(f"v_lshlrev_b32 v{v+1}, 4, v{v+1}")
    st(f"v_lshl_add_u32 v{v+1}, v{v}, 2, v{v+1}")
    st(f"v_bfe_u32 v{v}, v{l}, 2, 2")
    st(f"v_add_u32 v{v+1}, v{v+1}, v{v}")
    st(f"v_lshlrev_b32 v{v+1}, 7, v{v+1}")
    st(f"v_and_b32 v{v}, 3, v{l}")
    st(f"v_lshl_add_u32 v{v+1}, v{v}, 3, v{v+1}")
    st(f"s_lshl_b32 s42, s{S_WAVE}, 12")
    st(f"s_add_u32 s42, s42, {FT}")
    st(f"v_add_u32 v{v+1}, s42, v{v+1}")
    st(f"v_lshlrev_b32 v{v+2}, 4, v{l}")
    st.wait(vm="ft")
    for j in range(4):
        st(f"ds_read_b64_tr_b16 v[{TMP+24+4*j}:{TMP+24+4*j+1}], v{v+1} offset:{32*j}", tag=f"fr{j}")
        st(f"ds_read_b64_tr_b16 v[{TMP+24+4*j+2}:{TMP+24+4*j+3}], v{v+1} offset:{32*j+1024}", tag=f"fr{j}")
    for j in range(4):
        st("s_lshl_b32 s40, s98, 2")
        st(f"s_add_u32 s40, s40, {j}")
        st("s_mul_i32 s41, s40, 52429")
        st("s_lshr_b32 s41, s41, 18")
        st("s_mul_i32 s43, s41, 5")
        st("s_sub_u32 s40, s40, s43")
        st(f"s_mul_i32 s41, s41, {NKB}")
        st("s_add_u32 s41, s41, s99")
        st("s_mul_i32 s41, s41, 5")
        st("s_add_u32 s41, s41, s40")
        st("s_lshl_b32 s41, s41, 10")
        st(f"s_add_u32 s41, s41, {W2F_OFF}")
        st.wait(lg=f"fr{j}")
        st(f"buffer_store_dwordx4 v[{TMP+24+4*j}:{TMP+24+4*j+3}], v{v+2}, s[{S_WS}:{S_WS+3}], s41 offen{ST_FLAGS}", tag="fst")

XREG0 = SLOT
def x_region(j):
    return XREG0 + 16384 * (j if j < 8 else j - 5)

def x_phase(st, L, hook):
    l = V_LANE
    vXa, vXb, vXR, SUM, SQ = TMP + 4, TMP + 5, TMP + 6, TMP + 14, TMP + 18
    def chunk_ops(j):
        g = Stream()
        for i in range(4):
            g(f"s_add_u32 s{S_T+1}, s{S_XB}, {8*i*1280 + 128*j}")
            g(f"s_add_u32 m0, s{S_XM}, {x_region(j) + 1024*i}")
            g(f"buffer_load_dwordx4 v{vXa + (i & 1)}, s[{S_X}:{S_X+3}], s{S_T+1} offen lds", tag=f"X{j}")
        return g.ops
    def chunk(j): st.ops.extend(chunk_ops(j))
    if TOUCH:
        st(f"s_and_b32 s40, s{S_G}, 3")
        st("s_lshr_b32 s41, s2, 7")
        st("s_lshl_b32 s41, s41, 2")
        st("s_add_u32 s40, s40, s41")
        st("s_mul_i32 s40, s40, 20480")
        st(f"s_mul_i32 s41, s{S_R}, 163840")
        st("s_add_u32 s40, s40, s41")
        st(f"v_lshlrev_b32 v{TMP+22}, 4, v0")
        for i in range(5):
            st(f"buffer_load_dwordx4 v[{TMP+24}:{TMP+27}], v{TMP+22}, s[{S_X}:{S_X+3}], s40 offen", tag="touch")
            if i < 4: st("s_add_u32 s40, s40, 4096")
    st(f"v_lshrrev_b32 v{TMP}, 3, v{l}")
    st(f"v_lshrrev_b32 v{TMP+1}, 4, v{l}")
    st(f"v_and_b32 v{TMP+2}, 7, v{l}")
    st(f"v_xor_b32 v{TMP+2}, v{TMP+2}, v{TMP+1}")
    st(f"v_mul_u32_u24 v{TMP}, 1280, v{TMP}")
    st(f"v_lshl_add_u32 v{vXa}, v{TMP+2}, 4, v{TMP}")
    st(f"v_xor_b32 v{TMP+2}, 4, v{TMP+2}")
    st(f"v_lshl_add_u32 v{vXb}, v{TMP+2}, 4, v{TMP}")
    for j in range(2): chunk(j)
    stamp(st, 1, "x")
    hook("setup")
    st(f"v_and_b32 v{TMP}, 31, v{l}")
    st(f"v_bfe_u32 v{TMP+1}, v{l}, 1, 3")
    st(f"v_lshrrev_b32 v{TMP+2}, 5, v{l}")
    st(f"v_lshlrev_b32 v{TMP}, 7, v{TMP}")
    st(f"v_add_u32 v{TMP}, s{S_XM}, v{TMP}")
    for tt in range(4):
        st(f"v_add_u32 v{TMP+3}, {2*tt}, v{TMP+2}")
        st(f"v_xor_b32 v{TMP+3}, v{TMP+3}, v{TMP+1}")
        st(f"v_lshl_add_u32 v{vXR+tt}, v{TMP+3}, 4, v{TMP}")
        st(f"v_add_u32 v{vXR+4+tt}, {XREG0}, v{vXR+tt}")
    for tt in range(4):
        st(f"v_add_u32 v{vXR+tt}, {XREG0 + 65536}, v{vXR+tt}")
    SUM, SQ = TMP + 14, TMP + 18
    for k in range(4):
        st(f"v_mov_b32 v{SUM+k}, 0")
        st(f"v_mov_b32 v{SQ+k}, 0")
    stamp(st, 2, "x")
    for j in range(2, 5): chunk(j)
    stamp(st, 3, "x")
    def stats(j, q):
        for i in range(16):
            if i % 2 == 0:
                while q:
                    op = q.pop(0); st.ops.append(op)
                    if op.kind == "vmem": break
            r = X + 16 * j + i
            st(f"v_dot2c_f32_bf16 v{SUM+(i&3)}, 0x3f803f80, v{r}")
            st(f"v_dot2c_f32_bf16 v{SQ+(i&3)}, v{r}, v{r}")
    def reads(j):
        off = x_region(j) - XREG0
        base = vXR + 4
        if off >= 65536: base = vXR; off -= 65536
        for tt in range(4):
            r = X + 16 * j + 4 * tt
            st(f"ds_read_b128 v[{r}:{r+3}], v{base+tt} offset:{off}", tag=f"xr{j}")
    q = []
    for j in range(10):
        st.wait(vm=f"X{j}")
        if j == 0: stamp(st, 4, "x")
        if j == 9: stamp(st, 5, "x")
        reads(j)
        if j > 0:
            st.wait(lg=f"xr{j-1}")
            if j + 4 <= 9: q += chunk_ops(j + 4)
            if j == 6: q += hook("g0")
            if j == 7:
                st("s_barrier")
                q += hook("g12")
            stats(j - 1, q)
    st.ops.extend(q); q = []
    st.wait(lg="xr9")
    stats(9, [])
    st(f"v_add_f32 v{SUM}, v{SUM}, v{SUM+1}")
    st(f"v_add_f32 v{SUM+2}, v{SUM+2}, v{SUM+3}")
    st(f"v_add_f32 v{SQ}, v{SQ}, v{SQ+1}")
    st(f"v_add_f32 v{SQ+2}, v{SQ+2}, v{SQ+3}")
    st(f"v_add_f32 v{SUM}, v{SUM}, v{SUM+2}")
    st(f"v_add_f32 v{SQ}, v{SQ}, v{SQ+2}")
    st(f"v_mov_b32 v{SUM+1}, v{SUM}")
    st(f"v_mov_b32 v{SQ+1}, v{SQ}")
    st(f"v_permlane32_swap_b32 v{SUM}, v{SUM+1}")
    st(f"v_permlane32_swap_b32 v{SQ}, v{SQ+1}")
    st(f"v_add_f32 v{SUM}, v{SUM}, v{SUM+1}")
    st(f"v_add_f32 v{SQ}, v{SQ}, v{SQ+1}")
    st(f"v_mul_f32 v{SUM}, 0x3acccccd, v{SUM}")
    st(f"v_mul_f32 v{SQ}, 0x3acccccd, v{SQ}")
    st(f"v_fma_f32 v{SQ}, -v{SUM}, v{SUM}, v{SQ}")
    st(f"v_max_f32 v{SQ}, 0, v{SQ}")
    st(f"v_cvt_pk_bf16_f32 v{SUM}, v{SUM}, v{SQ}")
    st(f"v_and_b32 v{SQ}, 0xffff0000, v{SUM}")
    st(f"v_lshlrev_b32 v{SUM}, 16, v{SUM}")
    st(f"v_add_f32 v{SQ}, 0x3727c5ac, v{SQ}")
    st(f"v_cvt_pk_bf16_f32 v{SQ}, v{SQ}, v{SQ}")
    st(f"v_lshlrev_b32 v{SQ}, 16, v{SQ}")
    st(f"v_sqrt_f32 v{SQ}, v{SQ}")
    st(f"v_cvt_pk_bf16_f32 v{SQ}, v{SQ}, v{SQ}")
    st(f"v_lshlrev_b32 v{SQ}, 16, v{SQ}")
    st(f"v_rcp_f32 v{V_RS}, v{SQ}")
    st(f"v_mul_f32 v{V_C}, v{SUM}, v{V_RS}")
    st(f"v_sub_f32 v{V_C}, 0, v{V_C}")

def setup_common(st, L):
    st("s_cmp_ge_u32 s2, 256")
    st(f"s_cbranch_scc1 {L}_exit")
    stamp(st, 0)
    st(f"s_load_dwordx16 s[{KA}:{KA+15}], s[0:1], 0")
    st(f"s_load_dwordx2 s[{P_WS}:{P_WS+1}], s[0:1], {KA_WS}")
    st("v_lshrrev_b32 v1, 6, v0")
    st(f"v_and_b32 v{V_LANE}, 63, v0")
    st(f"v_readfirstlane_b32 s{S_WAVE}, v1")
    st("s_and_b32 s40, s2, 7")
    st("s_lshr_b32 s41, s2, 3")
    st("s_lshr_b32 s42, s40, 1")
    st("s_lshl_b32 s42, s42, 2")
    st("s_and_b32 s43, s41, 3")
    st(f"s_add_u32 s{S_R}, s42, s43")
    st("s_and_b32 s42, s40, 1")
    st("s_lshl_b32 s42, s42, 2")
    st("s_bfe_u32 s43, s41, 0x20002")
    st(f"s_add_u32 s{S_G}, s42, s43")
    st(f"s_lshl_b32 s42, s{S_R}, 2")
    st(f"s_add_u32 s42, s42, s{S_WAVE}")
    st(f"s_mul_i32 s{S_XB}, s42, {32*1280}")
    st(f"s_mul_i32 s{S_H}, s42, {2*NKB*1024}")
    st(f"s_add_u32 s{S_H}, s{S_H}, {HF_OFF}")
    st(f"s_lshl_b32 s{S_XM}, s{S_WAVE}, 12")
    st(f"s_mul_i32 s{S_M1}, s{S_WAVE}, 5120")
    st(f"s_mul_i32 s{S_M2}, s{S_WAVE}, 3072")
    st(f"s_lshl_b32 s{S_KV}, s{S_G}, 13")
    st(f"s_add_u32 s{S_KV}, s{S_KV}, {KV_OFF}")
    st.waitall(vm=False)
    srd(st, S_X, P_X, X_BYTES)
    srd(st, S_WS, P_WS, WS_USED)

def setup_late(st, L):
    l = V_LANE
    srd(st, S_DBG, P_DBG, 256)
    st(f"s_mov_b32 s{S_EPS}, 0x{EPS6:x}")
    st(f"s_mov_b32 s{S_L2E}, 0x{LOG2E:x}")
    st(f"s_mov_b32 s{S_HALF}, 0")
    st(f"s_mov_b32 s{S_HALF+1}, -1")
    st(f"s_mov_b32 s{S_HALF+2}, 0x0000ffff")
    st(f"s_mov_b32 s{S_HALF+3}, 0x0000ffff")
    a, b, c = FR, FR + 1, FR + 2
    st(f"v_lshrrev_b32 v{a}, 5, v{l}")
    st(f"v_lshlrev_b32 v{a}, 3, v{a}")
    st(f"v_bfe_u32 v{b}, v{l}, 2, 2")
    st(f"v_add_u32 v{a}, v{a}, v{b}")
    st(f"v_bfe_u32 v{b}, v{l}, 4, 1")
    st(f"v_lshlrev_b32 v{b}, 5, v{b}")
    st(f"v_and_b32 v{c}, 3, v{l}")
    st(f"v_lshl_add_u32 v{b}, v{c}, 3, v{b}")
    st(f"v_mul_u32_u24 v{c}, 320, v{a}")
    st(f"v_add_u32 v{V_T1}, v{c}, v{b}")
    st(f"v_add_u32 v{V_T1+1}, {3*SLOT}, v{V_T1}")
    st(f"v_mul_u32_u24 v{c}, 192, v{a}")
    st(f"v_add_u32 v{V_T2}, v{c}, v{b}")
    st(f"v_add_u32 v{V_T2+1}, {3*SLOT}, v{V_T2}")
    st(f"v_bfe_u32 v{a}, v{l}, 4, 1")
    st(f"v_mul_u32_u24 v{a}, {NKB*1024}, v{a}")
    st(f"v_and_b32 v{b}, 15, v{l}")
    st(f"v_lshl_add_u32 v{a}, v{b}, 4, v{a}")
    st(f"v_lshrrev_b32 v{b}, 5, v{l}")
    st(f"v_lshl_add_u32 v{V_H}, v{b}, 8, v{a}")

def dma_tables(st, typ):
    l = V_LANE
    a, b, c, d = FR, FR + 1, FR + 2, FR + 3
    if typ == "A":
        st(f"s_mul_i32 s40, s{S_G}, 160")
        st("s_add_u32 s40, s40, 1280")
        st(f"s_lshl_b32 s41, s{S_G}, 7")
    else:
        st(f"s_mul_i32 s44, s{S_G}, 5")
        st("s_add_u32 s44, s44, 16")
        st(f"s_cmp_eq_u32 s{S_G}, 6")
        st("s_cselect_b32 s44, 45, s44")
        st(f"s_cmp_eq_u32 s{S_G}, 7")
        st("s_cselect_b32 s44, 49, s44")
        st("s_lshl_b32 s40, s44, 6")
        st(f"s_mul_i32 s41, s{S_G}, 160")
    for i in range(5):
        st(f"v_add_u32 v{a}, {64*i}, v{l}")
        st(f"v_mul_u32_u24 v{b}, 3277, v{a}")
        st(f"v_lshrrev_b32 v{b}, 16, v{b}")
        st(f"v_mul_u32_u24 v{c}, 20, v{b}")
        st(f"v_sub_u32 v{c}, v{a}, v{c}")
        st(f"v_mul_u32_u24 v{b}, {3840 if typ == 'A' else 3456}, v{b}")
        st(f"v_lshl_add_u32 v{b}, v{c}, 4, v{b}")
        if typ == "A":
            st(f"v_cmp_le_u32 vcc, 10, v{c}")
            st(f"v_add_u32 v{d}, 1120, v{b}")
            st(f"v_cndmask_b32 v{b}, v{b}, v{d}, vcc")
        st(f"v_add_u32 v{V_D1+i}, s40, v{b}")
    for i in range(3):
        st(f"v_add_u32 v{a}, {64*i}, v{l}")
        st(f"v_mul_u32_u24 v{b}, 5462, v{a}")
        st(f"v_lshrrev_b32 v{b}, 16, v{b}")
        st(f"v_mul_u32_u24 v{c}, 12, v{b}")
        st(f"v_sub_u32 v{c}, v{a}, v{c}")
        if typ == "A":
            st(f"v_and_b32 v{c}, 7, v{c}")
        else:
            st(f"v_subrev_u32 v{d}, 10, v{c}")
            st(f"v_cmp_gt_u32 vcc, 10, v{c}")
            st(f"v_cndmask_b32 v{c}, v{d}, v{c}, vcc")
        st(f"v_mul_u32_u24 v{b}, {3456 if typ == 'A' else 3840}, v{b}")
        st(f"v_lshl_add_u32 v{b}, v{c}, 4, v{b}")
        st(f"v_add_u32 v{V_D2+i}, s41, v{b}")

def prefetch_weights(st, typ):
    v = TMP + 22
    sq, s1 = (S_W1, S_W2) if typ == "A" else (S_W2, S_W1)
    st(f"v_lshlrev_b32 v{v}, 4, v0")
    st("s_mul_i32 s40, s2, 9600")
    st("s_mul_i32 s41, s2, 8640")
    for i in range(3):
        st(f"buffer_load_dwordx4 v[{TMP+24}:{TMP+27}], v{v}, s[{sq}:{sq+3}], s40 offen", tag="pf")
        st("s_add_u32 s40, s40, 3200")
        st(f"buffer_load_dwordx4 v[{TMP+28}:{TMP+31}], v{v}, s[{s1}:{s1+3}], s41 offen", tag="pf")
        st("s_add_u32 s41, s41, 2880")

DUMP_XN = False
FUSED = False
TOUCH = True
NOFMT = False
NONORM = False
WPREF = True
def dump_xn(st):
    st(f"v_lshlrev_b32 v{TMP}, 4, v{V_LANE}")
    st(f"s_lshl_b32 s40, s{S_R}, 2")
    st(f"s_add_u32 s40, s40, s{S_WAVE}")
    st("s_mul_i32 s40, s40, 40960")
    for t in range(40):
        st(f"buffer_store_dwordx4 v[{X+4*t}:{X+4*t+3}], v{TMP}, s[{S_WS}:{S_WS+3}], s40 offen")
        st("s_add_u32 s40, s40, 1024")

def s1_type(st, L, typ):
    l = V_LANE
    P = Passes(st, typ)
    def type_consts():
        if typ == "A":
            st(f"s_mul_i32 s40, s{S_WAVE}, 7168")
            st(f"s_add_u32 s40, s40, {KVP}")
            a, b = FR + 8, FR + 9
            st(f"v_and_b32 v{a}, 31, v{l}")
            st(f"v_lshrrev_b32 v{b}, 5, v{l}")
            st(f"v_lshlrev_b32 v{b}, 4, v{b}")
            st(f"v_add_u32 v{V_Z}, s40, v{b}")
            st(f"v_mul_u32_u24 v{a}, 80, v{a}")
            st(f"v_add_u32 v{a}, v{a}, v{V_Z}")
            st(f"v_subrev_u32 v{V_KVA}, 1280, v{a}")
            st(f"s_lshl_b32 s{S_T+8}, s{S_G}, 11")
            st(f"s_add_u32 s{S_T+8}, s{S_T+8}, s{S_H}")
        else:
            st("s_lshl_b32 s44, s44, 10")
            st(f"s_add_u32 s{S_T+8}, s44, s{S_H}")
            st(f"s_add_u32 s{S_T+9}, s{S_T+8}, 4096")
            st(f"s_lshr_b32 s40, s{S_G}, 1")
            st("s_mul_i32 s40, s40, 5120")
            st(f"s_add_u32 s40, s40, {54*1024}")
            st(f"s_add_u32 s40, s40, s{S_H}")
            st(f"s_bitcmp1_b32 s{S_G}, 0")
            ev = [0, 512, 1024, 1536, 2048]; od = [3072, 3584, 4096, 4608, 2560]
            for hb in range(5):
                st(f"s_mov_b32 s{S_O+hb}, {ev[hb]}")
                st(f"s_cmov_b32 s{S_O+hb}, {od[hb]}")
            for hb in range(5):
                st(f"s_add_u32 s{S_O+hb}, s{S_O+hb}, s40")
            a = FR + 8
            st(f"v_and_b32 v{a}, 31, v{l}")
            st(f"v_mul_u32_u24 v{a}, {KVP_PITCH}, v{a}")
            st(f"v_lshrrev_b32 v{a+1}, 5, v{l}")
            st(f"v_lshl_add_u32 v{a}, v{a+1}, 4, v{a}")
            st(f"v_add_u32 v{V_KVA}, {KVP}, v{a}")
            DUMMY = KVP + 96 * KVP_PITCH
            r = [a + k for k in range(8)]
            for i in range(2):
                st(f"v_add_u32 v{r[0]}, {256*i}, v0")
                st(f"v_mul_u32_u24 v{r[1]}, 625, v{r[0]}")
                st(f"v_lshrrev_b32 v{r[1]}, 16, v{r[1]}")
                st(f"v_mul_u32_u24 v{r[2]}, 105, v{r[1]}")
                st(f"v_sub_u32 v{r[2]}, v{r[0]}, v{r[2]}")
                st(f"v_mul_u32_u24 v{r[3]}, 13108, v{r[2]}")
                st(f"v_lshrrev_b32 v{r[3]}, 16, v{r[3]}")
                st(f"v_mul_u32_u24 v{r[4]}, 5, v{r[3]}")
                st(f"v_sub_u32 v{r[4]}, v{r[2]}, v{r[4]}")
                st(f"v_mul_u32_u24 v{r[5]}, 5, v{r[1]}")
                st(f"v_add_u32 v{r[4]}, v{r[4]}, v{r[5]}")
                st(f"v_lshlrev_b32 v{r[4]}, 4, v{r[4]}")
                st(f"v_mul_u32_u24 v{r[5]}, 20, v{r[1]}")
                st(f"v_add_u32 v{r[5]}, v{r[5]}, v{r[3]}")
                st(f"v_add_u32 v{r[6]}, 80, v{r[1]}")
                st(f"v_cmp_eq_u32 vcc, 20, v{r[3]}")
                st(f"v_cndmask_b32 v{r[5]}, v{r[5]}, v{r[6]}, vcc")
                st(f"v_mul_u32_u24 v{r[5]}, {KVP_PITCH}, v{r[5]}")
                st(f"v_add_u32 v{r[5]}, v{r[5]}, v{r[4]}")
                st(f"v_add_u32 v{r[5]}, {KVP}, v{r[5]}")
                st(f"v_add_u32 v{r[6]}, {4*KVP_PITCH}, v{r[5]}")
                st(f"v_mov_b32 v{r[7]}, {DUMMY}")
                st(f"v_cndmask_b32 v{r[6]}, v{r[7]}, v{r[6]}, vcc")
                st(f"v_cmp_gt_u32 vcc, 420, v{r[0]}")
                st(f"v_cndmask_b32 v{V_W+2*i}, v{r[7]}, v{r[5]}, vcc")
                st(f"v_cndmask_b32 v{V_W+2*i+1}, v{r[7]}, v{r[6]}, vcc")
    def hook(what):
        if what == "setup":
            setup_late(st, L)
            if typ == "A":
                srd(st, S_W1, P_WQKV, WQKV_BYTES); srd(st, S_W2, P_W1, W1_BYTES)
                st(f"s_mul_i32 s{S_K1}, s{S_WAVE}, {16*3840}")
                st(f"s_mul_i32 s{S_K2}, s{S_WAVE}, {16*3456}")
            else:
                srd(st, S_W1, P_W1, W1_BYTES); srd(st, S_W2, P_WQKV, WQKV_BYTES)
                st(f"s_mul_i32 s{S_K1}, s{S_WAVE}, {16*3456}")
                st(f"s_mul_i32 s{S_K2}, s{S_WAVE}, {16*3840}")
            fmt_setup(st, L + typ + "_fmt")
            dma_tables(st, typ)
            type_consts()
        elif what == "g0":
            return P.group(0).ops
        elif what == "g12":
            ops = P.group(1).ops + P.group(2).ops
            if WPREF:
                g = Stream(); prefetch_weights(g, typ); ops += g.ops
            return ops
    if typ == "A":
        st(f"s_cmp_lg_u32 s{S_R}, 0")
        st(f"s_cbranch_scc1 {L}_nozero")
        for i in range(4): st(f"v_mov_b32 v{FR+i}, 0")
        st(f"v_lshlrev_b32 v{FR+4}, 4, v0")
        st(f"s_add_u32 s40, s{S_KV}, 4096")
        st(f"s_lshl_b32 s41, s{S_G}, 12")
        st(f"s_add_u32 s41, s41, {FL_OFF}")
        st(f"buffer_store_dwordx4 v[{FR}:{FR+3}], v{FR+4}, s[{S_WS}:{S_WS+3}], s{S_KV} offen sc0 sc1", note="cond")
        st(f"buffer_store_dwordx4 v[{FR}:{FR+3}], v{FR+4}, s[{S_WS}:{S_WS+3}], s40 offen sc0 sc1", note="cond")
        st(f"buffer_store_dwordx4 v[{FR}:{FR+3}], v{FR+4}, s[{S_WS}:{S_WS+3}], s41 offen sc0 sc1", note="cond")
        st("s_nop 1")
        st.label(f"{L}_nozero")
    x_phase(st, L, hook)
    stamp(st, 1)
    stamp(st, 6, "x")
    if typ == "A":
        def zsig(st):
            st(f"s_cmp_lg_u32 s{S_R}, 0")
            st(f"s_cbranch_scc1 {L}_nozsig")
            signal(st, L, "z", [f"s_mov_b32 s{S_T}, 0"], S_DBG, lanes=4, lane_stride=64)
            st.label(f"{L}_nozsig")
        P.after_barrier[0] = zsig
    flush(st, norm_groups(0)); flush(st, norm_groups(1))
    P.start(0)
    stamp(st, 2)
    fill = []
    for t in range(2, 40): fill += ([] if NONORM else norm_groups(t))
    if not NOFMT:
        P.after_barrier[1] = fmt_dma
        P.after_barrier[3] = fmt_finish
    P.after_barrier[4] = lambda st_: preload(st_, L, "initp", INIT_SPEC, S_DBG)
    P.after_barrier[6] = lambda st_: poll(st_, L, "init", INIT_SPEC, 8, S_DBG, preloaded="initp")
    if FUSED:
        P.before_barrier[8] = lambda st_: st_.wait(vm="fst")
        P.after_barrier[8] = lambda st_: signal(st_, L, "w2", [f"s_and_b32 s{S_T}, s2, 7", f"s_lshl_b32 s{S_T}, s{S_T}, 7", f"s_add_u32 s{S_T}, s{S_T}, {FL_OFF + 128*FL_W2}"], S_WS)
    if typ == "A":
        rest = P.run(0, 200, fill, per_slot=4, lookahead_to=200, vm_takes_slot=False)
        assert not rest
        stamp(st, 3)
        if DUMP_XN: dump_xn(st)
        kv_epilogue_A(st, L + "_A")
        stamp(st, 5)
        P.start(200)
        P.run(200, 240)
        P.drain_groups()
        st.wait(vm="kvat")
        st("s_barrier")
        signal(st, L, "kv", flag_off(FL_KVC, S_G), S_WS)
        P.run(240, 280)
        stamp(st, 6)
        if FUSED: preload(st, L, "startp", START_SPEC, S_WS)
        for b in range(2):
            flush(st, relu_pack_store(ACC2 + 16 * b, TMP + 8 + 8 * b, TMP, S_T + 8, 1024 * b))
        if FUSED: s2_part(st, L, "A")
    else:
        if FUSED:
            def hb_wait(st_):
                n = sum(1 for o in st_.ops[b_start:] if o.tag == "hst")
                assert n == 10, n
                st_.wait(vm="hst")
            b_start = len(st.ops)
            P.before_barrier[18] = hb_wait
            P.after_barrier[18] = lambda st_: signal(st_, L, "hb", flag_off(FL_HB, S_R), S_WS)
        rest = P.run(0, 200, fill, per_slot=4, vm_takes_slot=False)
        assert not rest
        stamp(st, 3)
        fill = []
        for b in range(5):
            fill += relu_pack_store(ACC1 + 16 * b, TMP + 8 + 8 * (b & 1), TMP, S_T + 8 if b < 4 else S_T + 9, 1024 * (b & 3))
        P.run(200, 204, per_slot=0)
        rest = P.run(204, 280, fill, per_slot=3)
        flush(st, rest)
        P.run(280, 300)
        P.drain_groups()
        preload(st, L, "kvp", flag_spec(FL_KVC, S_G), S_WS)
        P.run(300, 320)
        o_epilogue_B(st, L + "_B")
        if FUSED: s2_part(st, L, "B")

def s2_part(st, L, typ):
    stamp(st, 1, "s2")
    srd(st, S_FMT, P_OUT, OUT_BYTES)
    st(f"s_lshl_b32 s30, s{S_R}, 1")
    if typ == "B": st("s_add_u32 s30, s30, 1")
    quads = [(16 + 4 * i, 4) for i in range(9)] + [(52, 2)] + [(4 * i, 4) for i in range(4)] + [(54 + 4 * i, 4) for i in range(5)]
    def start_check(st_):
        poll(st_, L, "start", START_SPEC, (32, 8), S_WS, preloaded="startp")
        st_("s_barrier")
        stamp(st_, 2, "s2")
    def own_signal(st_):
        st_.wait(vm="hst" if typ == "A" else "ost")
        st_("s_barrier")
        signal(st_, L, "own", flag_off(FL_HA if typ == "A" else FL_OB, S_R), S_WS)
    def check(name, line, pre):
        def f(st_):
            poll(st_, L, name, flag_spec(line, S_R), 8, S_WS, preloaded=pre)
            st_("s_barrier")
        return f
    hooks = {0: {"pre": start_check}, ("p", 2): own_signal,
             3: {"post": lambda st_: preload(st_, L, "hap", flag_spec(FL_HA, S_R), S_WS)},
             10: {"pre": check("ha", FL_HA, "hap")},
             7: {"post": lambda st_: preload(st_, L, "obp", flag_spec(FL_OB, S_R), S_WS)},
             14: {"pre": check("ob", FL_OB, "obp")}}
    R = dict(ws=S_WS, x=S_X, out=S_FMT, c=S_G, rho=30, w=S_WAVE, lane=V_LANE, vA=3, vB=4, vL=5, vX=8, vR=10,
             acc=128, aring=0, sA=24, sB=28, sT=S_T + 4, res=96, tmp=112, stamp0=3, sgroup="s2")
    s2b.s2b_body(st, R, quads=quads, D=5, ldflags=" sc1", hooks=hooks)

def gen_k1e(name="proj_kernel"):
    st = Stream()
    L = name
    setup_common(st, L)
    st("s_cmp_ge_u32 s2, 128")
    st(f"s_cbranch_scc1 {L}_B")
    s1_type(st, L + "_a", "A")
    st(f"s_branch {L}_end")
    st.label(f"{L}_B")
    s1_type(st, L + "_b", "B")
    st.label(f"{L}_end")
    stamp_flush(st, 0, S_WS, S_WAVE, 7)
    st.label(f"{L}_exit")
    st("s_endpgm")
    txt, npad = kernel_text(name, st)
    print("k1e: hazard pad states", npad)
    return txt, descriptor(name, 512, 256), dict(grid=256, block=256, lds=K1_LDS)
```

```python
from common import *

RED_BYTES = 4 * 15 * 1024

def s2_order():
    return [(4 * i, 4) for i in range(18)] + [(72, 2)]

def s2b_body(st, R, quads=None, D=5, ldflags="", hooks=None):
    quads = quads or s2_order()
    hooks = hooks or {}
    sws, sx, so = R["ws"], R["x"], R["out"]
    lane = R["lane"]; w = R["w"]
    ACC = R["acc"]; AR = R["aring"]; NS = D + 1
    vA, vB, vL, vX, vR = R["vA"], R["vB"], R["vL"], R["vX"], R["vR"]
    sA, sB, sT = R["sA"], R["sB"], R["sT"]
    RES = R["res"]; RED = R.get("red", 0)
    n = len(quads)
    for j in range(4):
        st(f"s_add_u32 s{sT}, s{w}, {j}")
        st(f"s_and_b32 s{sT}, s{sT}, 3")
        st(f"s_lshl_b32 s{sT+1}, s{R['rho']}, 2")
        st(f"s_add_u32 s{sT}, s{sT}, s{sT+1}")
        st(f"s_mul_i32 s{sT}, s{sT}, {NKB*1024}")
        st(f"s_add_u32 s{sA+j}, s{sT}, {HF_OFF}")
    st(f"s_mul_i32 s{sB}, s{R['c']}, {NKB*5120}")
    st(f"s_add_u32 s{sB}, s{sB}, {W2F_OFF}")
    st(f"s_add_u32 s{sB+1}, s{sB}, 4096")
    st(f"v_lshlrev_b32 v{vL}, 4, v{lane}")
    st(f"s_lshl_b32 s{sT}, s{w}, 10")
    st(f"v_add_u32 v{vL+1}, s{sT}, v{vL}")
    st(f"s_mul_i32 s{sT}, s{w}, 5120")
    st(f"v_add_u32 v{vL+2}, s{sT}, v{vL}")
    st(f"s_cmp_ge_u32 s{w}, 2")
    st(f"s_cselect_b32 s{sT+2}, 0x40000000, 0")

    def slot(i): return AR + 36 * (i % NS)
    def group(i):
        g = Stream()
        if i >= n: return g
        kb, cnt = quads[i]
        r = slot(i)
        g(f"v_add_u32 v{vA}, {kb*1024}, v{vL+1}")
        g(f"v_add_u32 v{vB}, {kb*5120}, v{vL+2}")
        if cnt < 4:
            assert cnt == 2
            g(f"v_add_u32 v{vA}, s{sT+2}, v{vA}")
            g(f"v_add_u32 v{vB}, s{sT+2}, v{vB}")
        for jj in range(5):
            sb = sB if jj < 4 else sB + 1
            g(f"buffer_load_dwordx4 a[{r+16+4*jj}:{r+16+4*jj+3}], v{vB}, s[{sws}:{sws+3}], s{sb} offen offset:{1024*(jj&3)}{ldflags}", tag=f"S{i}")
        for j in range(4):
            g(f"buffer_load_dwordx4 a[{r+4*j}:{r+4*j+3}], v{vA}, s[{sws}:{sws+3}], s{sA+j} offen{ldflags}", tag=f"S{i}")
        return g

    def res_loads():
        st(f"v_and_b32 v{vX}, 15, v{lane}")
        st(f"s_lshl_b32 s{sT}, s{R['rho']}, 6")
        st(f"s_lshl_b32 s{sT+1}, s{w}, 4")
        st(f"s_add_u32 s{sT}, s{sT}, s{sT+1}")
        st(f"v_add_u32 v{vX}, s{sT}, v{vX}")
        st(f"v_mul_u32_u24 v{vX}, 1280, v{vX}")
        st(f"v_lshrrev_b32 v{vX+1}, 4, v{lane}")
        st(f"v_lshl_add_u32 v{vX}, v{vX+1}, 3, v{vX}")
        st(f"s_mul_i32 s{sT}, s{R['c']}, 160")
        st(f"v_add_u32 v{vX}, s{sT}, v{vX}")
        for jj in range(5):
            st(f"buffer_load_dwordx2 v[{RES+2*jj}:{RES+2*jj+1}], v{vX}, s[{sx}:{sx+3}], 0 offen offset:{32*jj}", tag="res")

    for i in range(D):
        if i in hooks and hooks[i].get("pre"): hooks[i]["pre"](st)
        st.extend(group(i))
        if ("p", i) in hooks: hooks[("p", i)](st)
    res_loads()
    for j in range(1, 4):
        st(f"s_add_u32 s{sT}, s{w}, {j}")
        st(f"s_and_b32 s{sT}, s{sT}, 3")
        st(f"s_mul_i32 s{sT}, s{sT}, 15360")
        st(f"s_add_u32 s{sT}, s{sT}, {RED + (j-1)*5120}")
        st(f"v_add_u32 v{vR+j-1}, s{sT}, v{vL}")
    st(f"s_mul_i32 s{sT}, s{w}, 15360")
    st(f"s_add_u32 s{sT}, s{sT}, {RED}")
    st(f"v_add_u32 v{vR+3}, s{sT}, v{vL}")
    stamp(st, R.get("stamp0", 1), R.get("sgroup", "main"))
    for i in range(n):
        if i + D in hooks and hooks[i + D].get("pre"): hooks[i + D]["pre"](st)
        gq = group(i + D).ops
        st.wait(vm=f"S{i}")
        r = slot(i)
        m = 0
        for j in range(4):
            for jj in range(5):
                acc = ACC + 20 * j + 4 * jj
                cin = "0" if i == 0 else f"v[{acc}:{acc+3}]"
                st(f"v_mfma_f32_16x16x32_bf16 v[{acc}:{acc+3}], a[{r+16+4*jj}:{r+16+4*jj+3}], a[{r+4*j}:{r+4*j+3}], {cin}")
                m += 1
                if m % 2 == 0:
                    while gq:
                        op = gq.pop(0); st.ops.append(op)
                        if op.kind == "vmem": break
        st.ops.extend(gq)
        if i in hooks and hooks[i].get("post"): hooks[i]["post"](st)
    stamp(st, R.get("stamp0", 1) + 1, R.get("sgroup", "main"))
    if R.get("pre_red"): R["pre_red"](st)
    for j in range(1, 4):
        for jj in range(5):
            acc = ACC + 20 * j + 4 * jj
            st(f"ds_write_b128 v{vR+j-1}, v[{acc}:{acc+3}] offset:{1024*jj}", tag="rw")
    st.wait(lg="rw")
    st("s_barrier")
    T = ACC + 20
    for k in range(15):
        st(f"ds_read_b128 v[{T+4*k}:{T+4*k+3}], v{vR+3} offset:{1024*k}", tag=f"rr{k}")
    st.wait(vm="res")
    for jj in range(5):
        acc = ACC + 4 * jj
        for js in range(3):
            k = js * 5 + jj
            st.wait(lg=f"rr{k}")
            for i in range(4):
                st(f"v_add_f32 v{acc+i}, v{acc+i}, v{T+4*k+i}")
    T2 = R["tmp"]
    for jj in range(5):
        acc = ACC + 4 * jj; r = RES + 2 * jj
        st(f"v_lshlrev_b32 v{T2}, 16, v{r}")
        st(f"v_and_b32 v{T2+1}, 0xffff0000, v{r}")
        st(f"v_lshlrev_b32 v{T2+2}, 16, v{r+1}")
        st(f"v_and_b32 v{T2+3}, 0xffff0000, v{r+1}")
        for i in range(4):
            st(f"v_add_f32 v{T2+i}, v{T2+i}, v{acc+i}")
        st(f"v_cvt_pk_bf16_f32 v{r}, v{T2}, v{T2+1}")
        st(f"v_cvt_pk_bf16_f32 v{r+1}, v{T2+2}, v{T2+3}")
        st(f"buffer_store_dwordx2 v[{r}:{r+1}], v{vX}, s[{so}:{so+3}], 0 offen offset:{32*jj}")

def gen_k2b(name="out_kernel", D=5):
    st = Stream()
    L = name
    st("s_cmp_ge_u32 s2, 256")
    st(f"s_cbranch_scc1 {L}_exit")
    stamp(st, 0)
    st(f"s_load_dwordx2 s[4:5], s[0:1], {KA_X}")
    st(f"s_load_dwordx2 s[6:7], s[0:1], {KA_OUT}")
    st(f"s_load_dwordx2 s[12:13], s[0:1], {KA_WS}")
    st("v_lshrrev_b32 v1, 6, v0")
    st("v_and_b32 v2, 63, v0")
    st("v_readfirstlane_b32 s14, v1")
    st("s_and_b32 s28, s2, 7")
    st("s_lshr_b32 s29, s2, 3")
    st("s_and_b32 s30, s28, 1")
    st("s_lshl_b32 s30, s30, 2")
    st("s_and_b32 s31, s29, 3")
    st("s_add_u32 s30, s30, s31")
    st("s_lshr_b32 s31, s28, 1")
    st("s_lshl_b32 s31, s31, 3")
    st("s_lshr_b32 s29, s29, 2")
    st("s_add_u32 s31, s31, s29")
    st.waitall(vm=False)
    srd(st, 16, 4, X_BYTES)
    srd(st, 20, 12, WS_USED)
    srd(st, 24, 6, OUT_BYTES)
    R = dict(ws=20, x=16, out=24, c=30, rho=31, w=14, lane=2, vA=3, vB=4, vL=5, vX=8, vR=10,
             acc=16, aring=0, sA=32, sB=36, sT=40, res=96, tmp=112)
    s2b_body(st, R, D=D)
    st.label(f"{L}_end")
    stamp_flush(st, 2, 20, 14, 3)
    st.label(f"{L}_exit")
    st("s_endpgm")
    txt, npad = kernel_text(name, st)
    return txt, descriptor(name, 512, 256), dict(grid=256, block=256, lds=RED_BYTES)
```

```python
import sys, os
import common
if len(sys.argv) > 2 and sys.argv[2] == 'prof':
    common.PROF = True
    if len(sys.argv) > 3: common.STAMP_SET = sys.argv[3]
from build import *
import k1e
k1e.FUSED = True
k1e.ST_FLAGS = " sc1"
if os.environ.get('WPREF') == '0': k1e.WPREF = False
if os.environ.get('TOUCH') == '0': k1e.TOUCH = False
name = common.NAME + "_kernel"
t, d, l = k1e.gen_k1e(name)
hdr = open("cdna_kernels/" + common.NAME + ".s.ref").read().split("; Override launch")[0]
out = hdr + f"; @launch grid=({l['grid']},1,1) block=({l['block']},1,1) lds={l['lds']}\n"
out += '.amdgcn_target "amdgcn-amd-amdhsa--gfx950"\n.text\n' + t + '.section .rodata,"a"\n' + d
open(sys.argv[1], "w").write(out)
```

```python
from asmlib import *

NAME = "parallel_sum__linear_attn_block__dense_activation_relu__prompt"

KA_X, KA_WQKV, KA_WO, KA_BX, KA_W1, KA_W2, KA_OUT, KA_DBG, KA_WS = 0, 8, 16, 24, 32, 40, 48, 56, 64

S, D, DFF = 2048, 640, 1728
X_BYTES = S * D * 2
WQKV_BYTES = D * 3 * D * 2
WO_BYTES = D * D * 2
W1_BYTES = D * DFF * 2
W2_BYTES = DFF * D * 2
OUT_BYTES = S * D * 2

XN_OFF = 0x0
HF_OFF = 0x280000
W2F_OFF = 0xBC0000
KV_OFF = 0xEA8000
FL_OFF = 0xED8000
FL_KVC, FL_HB, FL_HA, FL_OB, FL_W2 = 0, 8, 24, 40, 56
WS_USED = 0xEE0000
NKB = 74

def srd(st, base, lo, size):
    st(f"s_mov_b32 s{base}, s{lo}")
    st(f"s_mov_b32 s{base+1}, s{lo+1}")
    st(f"s_mov_b32 s{base+2}, {size}")
    st(f"s_mov_b32 s{base+3}, 0x20000")

def kernel_text(name, st):
    body, npad = finalize(st.ops)
    return (f".globl {name}\n.p2align 8\n.type {name},@function\n{name}:\n" + body + "\n"), npad

def descriptor(name, vgpr, accum, sgpr=102):
    return f""".p2align 6
.amdhsa_kernel {name}
  .amdhsa_next_free_vgpr {vgpr}
  .amdhsa_next_free_sgpr {sgpr}
  .amdhsa_accum_offset {accum}
  .amdhsa_group_segment_fixed_size 0
  .amdhsa_kernarg_size 72
  .amdhsa_user_sgpr_count 2
  .amdhsa_user_sgpr_kernarg_segment_ptr 1
  .amdhsa_system_sgpr_workgroup_id_x 1
  .amdhsa_float_denorm_mode_32 3
.end_amdhsa_kernel
"""


PROF = False
HWID = False
PROF_OFF = 0xEB8000
S_STAMP = 80
STAMP_SET = "main"
def stamp(st, i, group="main"):
    if PROF and (group == STAMP_SET or i == 0): st(f"s_memrealtime s[{S_STAMP+2*i}:{S_STAMP+2*i+1}]")
def stamp_flush(st, kidx, ws_srd, wave_sgpr, n):
    if not PROF: return
    st("s_waitcnt vmcnt(0) lgkmcnt(0)")
    st(f"s_memrealtime s[{S_STAMP+2*n}:{S_STAMP+2*n+1}]")
    st("s_waitcnt lgkmcnt(0)")
    st("s_lshl_b32 s78, s2, 2")
    st(f"s_add_u32 s78, s78, s{wave_sgpr}")
    st("s_lshl_b32 s78, s78, 5")
    st(f"s_add_u32 s78, s78, {PROF_OFF + kidx*32768}")
    st("s_mov_b64 exec, 1")
    st("v_mov_b32 v1, 0")
    if HWID:
        st("s_getreg_b32 s79, hwreg(HW_REG_HW_ID)")
        st("v_mov_b32 v0, s79")
        st("s_add_u32 s79, s78, 32768")
        st(f"buffer_store_dword v0, v1, s[{ws_srd}:{ws_srd+3}], s79 offen")
        st("s_nop 1")
        st("v_mov_b32 v0, s3")
        st(f"buffer_store_dword v0, v1, s[{ws_srd}:{ws_srd+3}], s79 offen offset:4")
        st("s_nop 1")
    for i in range(n + 1):
        st(f"v_mov_b32 v0, s{S_STAMP+2*i}")
        st(f"buffer_store_dword v0, v1, s[{ws_srd}:{ws_srd+3}], s78 offen offset:{4*i}")
        st("s_nop 1")
```

```python
from common import *
import s2b

SLOT = 20480
NSLOT, DIST, LOOK = 6, 4, 4
NFR = LOOK + 2
KVP = NSLOT * SLOT
KVP_PITCH = 336
K1_LDS = 163840
FT = KVP + 16384
LOG2E = 0x3fb8aa3b
EPS6 = 0x358637bd

for c in range(320): assert (c * 3277) >> 16 == c // 20
for c in range(192): assert (c * 5462) >> 16 == c // 12
for c in range(512): assert (c * 625) >> 16 == c // 105
for c in range(105): assert (c * 13108) >> 16 == c // 5
for c in range(1024): assert (c * 5669) >> 22 == c // 740

V_LANE = 2
V_D1 = 3
V_D2 = 8
V_H = 11
V_RS, V_C = 12, 13
V_T1 = 14
FR = 16
TMP = 40
V_T2 = 88
V_KVA = 90
V_Z = 91
V_W = 91
V_FLAG = 95
V_FOFF = 1
X = 96
ACC1 = 0
ACC2 = 80
S_X = 4; S_FMT = 8
S_WAVE = 14; S_G = 15; S_R = 16; S_XB = 17; S_M1 = 18; S_M2 = 19
S_WS = 20; S_W1 = 24; S_W2 = 28; S_DBG = 32
S_K1 = 36; S_K2 = 37; S_H = 38; S_XM = 39; S_T = 40
S_O = 50
S_EPS = 56; S_L2E = 57; S_KV = 58; S_HALF = 60
KA = 64
P_X, P_WQKV, P_WO, P_W1, P_W2, P_OUT, P_DBG = 64, 66, 68, 72, 74, 76, 78
P_WS = 12
SFD = (100, 101, 70, 71)
S_FTM = 59
S_PF = 44
S_GB = 55
V_FMT = TMP + 36
ST_FLAGS = ""

def one(txt, **kw):
    s = Stream(); s(txt, **kw); return s.ops

def relu_pack_store(acc, P, T, sbase, imm):
    G = []
    for p in range(8):
        t = T + 2 * (p & 1)
        G.append(one(f"v_accvgpr_read_b32 v{t}, a{acc+2*p}"))
        G.append(one(f"v_accvgpr_read_b32 v{t+1}, a{acc+2*p+1}"))
        G.append(one(f"v_cvt_pk_bf16_f32 v{P+p}, v{t}, v{t+1}"))
        G.append(one(f"v_pk_max_i16 v{P+p}, v{P+p}, 0"))
    for u in range(2):
        G.append(one(f"buffer_store_dwordx4 v[{P+4*u}:{P+4*u+3}], v{V_H}, s[{S_WS}:{S_WS+3}], s{sbase} offen offset:{imm+512*u}{ST_FLAGS}", tag="hst"))
    return G

def phi_groups(regs, tbase, ntmp=8):
    G = []
    n = len(regs)
    for i0 in range(0, n, ntmp):
        blk = regs[i0:i0+ntmp]
        for k, r in enumerate(blk): G.append(one(f"v_min_f32 v{tbase+k}, 0, v{r}"))
        for k, r in enumerate(blk): G.append(one(f"v_mul_f32 v{tbase+k}, s{S_L2E}, v{tbase+k}"))
        for k, r in enumerate(blk): G.append(one(f"v_exp_f32 v{tbase+k}, v{tbase+k}"))
        for k, r in enumerate(blk): G.append(one(f"v_max_f32 v{r}, 0, v{r}"))
        for k, r in enumerate(blk): G.append(one(f"v_add_f32 v{r}, s{S_EPS}, v{r}"))
        for k, r in enumerate(blk): G.append(one(f"v_add_f32 v{r}, v{r}, v{tbase+k}"))
    return G

def norm_groups(t):
    G = []
    for pr in range(2):
        r0, r1 = X + 4 * t + 2 * pr, X + 4 * t + 2 * pr + 1
        a = TMP
        G.append(one(f"v_lshlrev_b32 v{a}, 16, v{r0}"))
        G.append(one(f"v_and_b32 v{a+1}, 0xffff0000, v{r0}"))
        G.append(one(f"v_lshlrev_b32 v{a+2}, 16, v{r1}"))
        G.append(one(f"v_and_b32 v{a+3}, 0xffff0000, v{r1}"))
        for k in range(4):
            G.append(one(f"v_fma_f32 v{a+k}, v{a+k}, v{V_RS}, v{V_C}"))
        G.append(one(f"v_cvt_pk_bf16_f32 v{r0}, v{a}, v{a+1}"))
        G.append(one(f"v_cvt_pk_bf16_f32 v{r1}, v{a+2}, v{a+3}"))
    return G

def flush(st, groups):
    for g in groups: st.ops.extend(g)

def head(x): return x // 20

class Passes:
    def __init__(self, st, typ):
        self.st = st; self.typ = typ
        self.nb2 = 2 if typ == "A" else 3
        self.items = [(1, t, b) for t in range(40) for b in range(5)] + [(2, t, b) for t in range(40) for b in range(self.nb2)]
        self.pend = []; self.gq = []
        self.barriered = set()
        self.after_barrier = {}
        self.before_barrier = {}
        self.since = 99
        self.extra = []
        self.inject = {}
        self.injq = []
    def group(self, s):
        g = Stream()
        if s >= 20: return g
        slot = s % NSLOT
        if s < 10:
            g(f"s_add_u32 s{S_GB}, s{S_K1}, {(0 if SAMEW else s) * 64 * (3840 if self.typ == 'A' else 3456)}")
            for i in range(5):
                g(f"s_add_u32 m0, s{S_M1}, {slot*SLOT + 1024*i}")
                g(f"buffer_load_dwordx4 v{V_D1+i}, s[{S_W1}:{S_W1+3}], s{S_GB} offen lds", tag=f"G{s}")
        else:
            g(f"s_add_u32 s{S_GB}, s{S_K2}, {(s-10) * 64 * (3456 if self.typ == 'A' else 3840)}")
            for i in range(3):
                g(f"s_add_u32 m0, s{S_M2}, {slot*SLOT + 1024*i}")
                g(f"buffer_load_dwordx4 v{V_D2+i}, s[{S_W2}:{S_W2+3}], s{S_GB} offen lds", tag=f"G{s}")
        return g
    def frag(self, i): return FR + 4 * (i % NFR)
    def read(self, i):
        st = self.st
        p, t, b = self.items[i]
        s = (0 if p == 1 else 10) + t // 4
        slot = s % NSLOT
        pitch = 320 if p == 1 else 192
        off = slot * SLOT + (t & 3) * 16 * pitch + 64 * b
        base = V_T1 if p == 1 else V_T2
        if off >= 3 * SLOT: base += 1; off -= 3 * SLOT
        r = self.frag(i)
        if t % 4 == 0 and b == 0 and s not in self.barriered:
            self.barriered.add(s)
            assert s not in self.pend and not any(o.tag == f"G{s}" for o in self.gq), f"stage {s} not issued"
            st.wait(vm=f"G{s}")
            if s in self.before_barrier: self.before_barrier[s](st)
            st("s_barrier")
            if s in (1, 3, 5, 7, 9): stamp(st, {1: 1, 3: 2, 5: 3, 7: 4, 9: 5}[s], "p1")
            if s == 0: self.pend.append(3)
            self.pend.append(s + DIST)
            if s in self.after_barrier: self.after_barrier[s](st)
        st(f"ds_read_b64_tr_b16 v[{r}:{r+1}], v{base} offset:{off}", tag=f"F{i}")
        st(f"ds_read_b64_tr_b16 v[{r+2}:{r+3}], v{base} offset:{off + 4*pitch}", tag=f"F{i}")
    def start(self, i0):
        for i in range(i0, i0 + LOOK): self.read(i)
    def run(self, lo, hi, fillers=None, per_slot=2, lookahead_to=None, vm_takes_slot=True):
        st = self.st
        fillers = fillers if fillers is not None else []
        lim = lookahead_to if lookahead_to is not None else len(self.items)
        for i in range(lo, hi):
            p, t, b = self.items[i]
            while self.pend:
                self.gq.extend(self.group(self.pend.pop(0)).ops)
            if self.extra:
                self.gq.extend(self.extra); self.extra = []
            if i in self.inject: self.injq.extend(self.inject.pop(i))
            st.wait(lg=f"F{i}")
            r = self.frag(i)
            acc = (ACC1 if p == 1 else ACC2) + 16 * b
            cin = "0" if t == 0 else f"a[{acc}:{acc+15}]"
            W = f"v[{r}:{r+3}]"; Xr = f"v[{X+4*t}:{X+4*t+3}]"
            if p == 1 and self.typ == "A":
                st(f"v_mfma_f32_32x32x16_bf16 a[{acc}:{acc+15}], {Xr}, {W}, {cin}")
            else:
                st(f"v_mfma_f32_32x32x16_bf16 a[{acc}:{acc+15}], {W}, {Xr}, {cin}")
            used = 0
            every = 4 if p == 1 else (VME_A2 if self.typ == "A" else VME_B2)
            if p == 1: every = VME_1
            self.since += 1
            if self.gq and self.since >= every:
                self.since = 0
                while self.gq:
                    op = self.gq.pop(0); st.ops.append(op)
                    if op.kind == "vmem":
                        used = 1 if vm_takes_slot else 0
                        break
            if i + LOOK < lim: self.read(i + LOOK)
            if self.injq:
                isst = any(o.kind == "vmem" for o in self.injq[0])
                if not isst or (i % 4 == 2 and used == 0 and self.since > 0):
                    st.ops.extend(self.injq.pop(0))
            for _ in range(per_slot - used):
                if fillers: st.ops.extend(fillers.pop(0))
        return fillers
    def drain_groups(self):
        while self.pend:
            self.gq.extend(self.group(self.pend.pop(0)).ops)
        self.st.ops.extend(self.gq); self.gq = []

V_FTGT = TMP + 28
def _flag_addr(st, spec):
    lines, stride, lanes, extra = spec
    for ln in lines: st(ln)
    if lanes == 1:
        st(f"v_mov_b32 v{V_FOFF}, s{S_T}")
    else:
        st(f"v_mul_u32_u24 v{V_FOFF}, {stride}, v{V_LANE}")
        st(f"v_add_u32 v{V_FOFF}, s{S_T}, v{V_FOFF}")
        if extra:
            for ln in extra: st(ln)
            st(f"v_mov_b32 v{V_FTGT}, s{S_T+1}")
            st(f"v_cmp_eq_u32 vcc, {lanes-1}, v{V_LANE}")
            st(f"v_cndmask_b32 v{V_FOFF}, v{V_FOFF}, v{V_FTGT}, vcc")

def preload(st, L, name, spec, srd):
    st(f"s_cmp_lg_u32 s{S_WAVE}, 0")
    st(f"s_cbranch_scc1 {L}_{name}_pre")
    _flag_addr(st, spec)
    lanes = spec[2]
    st(f"s_mov_b64 exec, {(1 << lanes) - 1}")
    st(f"buffer_load_dword v{V_FLAG}, v{V_FOFF}, s[{srd}:{srd+3}], 0 offen sc0 sc1", note="cond")
    st("s_mov_b64 exec, -1")
    st.label(f"{L}_{name}_pre")
    st.mark(name)

def poll(st, L, name, spec, targets, srd, preloaded=None):
    lanes = spec[2]
    mask = (1 << lanes) - 1
    st(f"s_cmp_lg_u32 s{S_WAVE}, 0")
    st(f"s_cbranch_scc1 {L}_{name}_ok")
    if isinstance(targets, tuple):
        st(f"v_mov_b32 v{V_FTGT}, {targets[0]}")
        st(f"v_mov_b32 v{V_FTGT+1}, {targets[1]}")
        st(f"v_cmp_eq_u32 vcc, {lanes-1}, v{V_LANE}")
        st(f"v_cndmask_b32 v{V_FTGT}, v{V_FTGT}, v{V_FTGT+1}, vcc")
    else:
        st(f"v_mov_b32 v{V_FTGT}, {targets}")
    st(f"s_mov_b64 exec, {mask}")
    if preloaded:
        st.waitmark(preloaded)
        st(f"v_cmp_ge_u32 vcc, v{V_FLAG}, v{V_FTGT}")
        st(f"s_cmp_eq_u64 vcc, {mask}")
        st(f"s_cbranch_scc1 {L}_{name}_done")
    st(f"s_mov_b32 s{S_T+2}, 0")
    import common
    if common.HWID:
        k = {"init": 0, "kv": 1, "start": 2, "ha": 3, "ob": 4}[name]
        st(f"s_or_b32 s3, s3, {1 << k}")
    st.label(f"{L}_{name}_spin")
    st(f"buffer_load_dword v{V_FLAG}, v{V_FOFF}, s[{srd}:{srd+3}], 0 offen sc0 sc1", note="cond")
    st("s_waitcnt vmcnt(0)", note="cond")
    st(f"v_cmp_ge_u32 vcc, v{V_FLAG}, v{V_FTGT}")
    st(f"s_add_u32 s{S_T+2}, s{S_T+2}, 1")
    st(f"s_cmp_ge_u32 s{S_T+2}, 0x40000")
    st(f"s_cbranch_scc1 {L}_{name}_done")
    st(f"s_cmp_eq_u64 vcc, {mask}")
    st(f"s_cbranch_scc0 {L}_{name}_spin")
    st.label(f"{L}_{name}_done")
    st("s_mov_b64 exec, -1")
    st.label(f"{L}_{name}_ok")

def flag_off(line_base, sreg):
    return [f"s_lshl_b32 s{S_T}, s{sreg}, 7", f"s_add_u32 s{S_T}, s{S_T}, {FL_OFF + 128*line_base}"]
def flag_spec(line_base, sreg): return (flag_off(line_base, sreg), 0, 1, None)

INIT_SPEC = ([f"s_and_b32 s{S_T}, s2, 3", f"s_lshl_b32 s{S_T}, s{S_T}, 6"], 0, 1, None)
START_SPEC = ([f"s_mov_b32 s{S_T}, {FL_OFF + 128*FL_W2}"], 128, 9,
              [f"s_lshl_b32 s{S_T+1}, s{S_R}, 7", f"s_add_u32 s{S_T+1}, s{S_T+1}, {FL_OFF + 128*FL_HB}"])

def signal(st, L, name, off_lines, srd, lanes=1, lane_stride=0):
    st(f"s_cmp_lg_u32 s{S_WAVE}, 0")
    st(f"s_cbranch_scc1 {L}_{name}_sig")
    st(f"v_mov_b32 v{TMP+4}, 1")
    for ln in off_lines: st(ln)
    if lane_stride:
        st(f"v_mul_u32_u24 v{TMP+5}, {lane_stride}, v{V_LANE}")
        st(f"v_add_u32 v{TMP+5}, s{S_T}, v{TMP+5}")
    else:
        st(f"v_mov_b32 v{TMP+5}, s{S_T}")
    st(f"s_mov_b64 exec, {(1 << lanes) - 1}")
    st(f"buffer_atomic_add v{TMP+4}, v{TMP+5}, s[{srd}:{srd+3}], 0 offen", note="cond")
    st("s_mov_b64 exec, -1")
    st.label(f"{L}_{name}_sig")

def kv_epilogue_A(st, L):
    PK = [TMP, TMP + 8, TMP + 16]; VB = [TMP + 24, TMP + 32, TMP + 40]
    VAL = FR; T = FR + 16
    for vb, b in ((0, 2), (1, 3), (2, 4)):
        a = ACC1 + 16 * b
        for i in range(16): st(f"v_accvgpr_read_b32 v{VAL+i}, a{a+i}")
        for p in range(8):
            st(f"v_cvt_pk_bf16_f32 v{VB[vb]+p}, v{VAL+2*p}, v{VAL+2*p+1}")
    st(f"v_mov_b32 v{T}, 0x3f803f80")
    for p in range(8):
        st(f"v_cndmask_b32 v{VB[0]+p}, v{VB[0]+p}, v{T}, s[{S_HALF+2}:{S_HALF+3}]")
    for kb in range(3):
        a = ACC1 + 16 * kb
        for i in range(16): st(f"v_accvgpr_read_b32 v{VAL+i}, a{a+i}")
        flush(st, phi_groups([VAL + i for i in range(16)], T, 8))
        for p in range(8):
            st(f"v_cvt_pk_bf16_f32 v{PK[kb]+p}, v{VAL+2*p}, v{VAL+2*p+1}")
    stamp(st, 4)
    tiles = [(0, 0), (0, 1), (1, 1), (1, 2), (2, 2), (1, 0), (2, 0)]
    DT = [16 * i for i in range(7)]
    for tau in range(2):
        for n, (kd, ve) in enumerate(tiles):
            d = DT[n]
            cin = "0" if tau == 0 else f"a[{d}:{d+15}]"
            st(f"v_mfma_f32_32x32x16_bf16 a[{d}:{d+15}], v[{PK[kd]+4*tau}:{PK[kd]+4*tau+3}], v[{VB[ve]+4*tau}:{VB[ve]+4*tau+3}], {cin}")
    eoff = {0: -16, 1: 16, 2: 48}
    def setexec(mask):
        st(f"s_mov_b32 exec_lo, 0x{mask & 0xffffffff:x}")
        st(f"s_mov_b32 exec_hi, 0x{mask >> 32:x}")
    for n, (kd, ve) in enumerate(tiles):
        for q in range(4):
            r = DT[n] + 4 * q
            if n < 5:
                mask = 0
                for l in range(64):
                    c, h = l & 31, l >> 5
                    d = 32 * kd + 8 * q + 4 * h
                    if d >= 80 or (ve == 0 and c < 16): continue
                    e = eoff[ve] + c
                    if e < 80 and head(e) == head(d): mask |= 1 << l
                if mask:
                    setexec(mask)
                    st(f"ds_write_b128 v{V_KVA}, a[{r}:{r+3}] offset:{80*(eoff[ve]+16) + 128*kd + 32*q}", tag="kvw")
            if ve == 0:
                byhead = {}
                for h in range(2):
                    d = 32 * kd + 8 * q + 4 * h
                    if d < 80: byhead[head(d)] = byhead.get(head(d), 0) | (1 << (32 * h))
                for hd, mask in byhead.items():
                    setexec(mask)
                    st(f"ds_write_b128 v{V_Z}, a[{r}:{r+3}] offset:{1600*hd + 1600 + 128*kd + 32*q}", tag="kvw")
    st("s_mov_b64 exec, -1")
    st.wait(lg="kvw")
    st("s_barrier")
    A0 = TMP + 4
    st(f"v_lshlrev_b32 v{A0}, 2, v0")
    st(f"v_add_u32 v{A0+1}, {KVP}, v{A0}")
    RB = FR
    for i in range(7):
        for wv in range(4):
            st(f"ds_read_b32 v{RB+4*i+wv}, v{A0+1} offset:{7168*wv + 1024*i}", tag=f"kr{i}")
    st(f"s_add_u32 s{S_T+2}, s{S_KV}, 4096")
    for i in range(7):
        st.wait(lg=f"kr{i}")
        r = RB + 4 * i
        st(f"v_add_f32 v{r}, v{r}, v{r+1}")
        st(f"v_add_f32 v{r+2}, v{r+2}, v{r+3}")
        st(f"v_add_f32 v{r}, v{r}, v{r+2}")
        sreg = S_KV if i < 4 else S_T + 2
        st(f"buffer_atomic_add_f32 v{r}, v{A0}, s[{S_WS}:{S_WS+3}], s{sreg} offen offset:{1024*(i&3)}", tag="kvat")

def q_epilogue_B(st, L):
    PQ = TMP; VAL = FR; T = FR + 16
    for b in range(3):
        a = ACC2 + 16 * b
        n = 16 if b < 2 else 8
        for i in range(n): st(f"v_accvgpr_read_b32 v{VAL+i}, a{a+i}")
        flush(st, phi_groups([VAL + i for i in range(n)], T, 8))
        for p in range(n // 2):
            st(f"v_cvt_pk_bf16_f32 v{PQ+8*b+p}, v{VAL+2*p}, v{VAL+2*p+1}")
    for i in range(4): st(f"v_mov_b32 v{VAL+i}, 0")
    st(f"v_lshlrev_b32 v{T}, 4, v0")
    st(f"v_add_u32 v{T}, {KVP}, v{T}")
    for i in range(8):
        st(f"ds_write_b128 v{T}, v[{VAL}:{VAL+3}] offset:{4096*i}", tag="z")

def o_block_B(st, L, regs, preloaded):
    PQ = TMP
    T, RT, NRT, AF, NAF, DT, RD = regs
    poll(st, L, "kv", flag_spec(FL_KVC, S_G), 16, S_WS, preloaded=preloaded)
    st.wait(lg="z")
    st("s_barrier")
    stamp(st, 5)
    st(f"v_lshlrev_b32 v{T}, 4, v0")
    st(f"s_add_u32 s{S_T+2}, s{S_KV}, 4096")
    st(f"buffer_load_dwordx4 v[{T+4}:{T+7}], v{T}, s[{S_WS}:{S_WS+3}], s{S_KV} offen sc0 sc1", tag="kvl0")
    st(f"buffer_load_dwordx4 v[{T+8}:{T+11}], v{T}, s[{S_WS}:{S_WS+3}], s{S_T+2} offen sc0 sc1", tag="kvl1")
    st.wait(vm="kvl0")
    st(f"ds_write_b128 v{V_W}, v[{T+4}:{T+7}]", tag="kvw")
    st(f"ds_write_b128 v{V_W+1}, v[{T+4}:{T+7}]", tag="kvw")
    st.wait(vm="kvl1")
    st(f"ds_write_b128 v{V_W+2}, v[{T+8}:{T+11}]", tag="kvw")
    st(f"ds_write_b128 v{V_W+3}, v[{T+8}:{T+11}]", tag="kvw")
    st.wait(lg="kvw")
    st("s_barrier")
    frs = [(0, 0), (0, 1), (0, 2), (1, 1), (1, 2), (1, 3), (1, 4), (2, 0), (2, 1), (2, 2), (2, 3), (2, 4)]
    def rd(n):
        E, tp = frs[n]
        r = RT + 8 * (n % NRT)
        off = 32 * E * KVP_PITCH + 64 * tp
        st(f"ds_read_b128 v[{r}:{r+3}], v{V_KVA} offset:{off}", tag=f"kf{n}")
        st(f"ds_read_b128 v[{r+4}:{r+7}], v{V_KVA} offset:{off+32}", tag=f"kf{n}")
    for n in range(NRT): rd(n)
    first = {0: True, 1: True, 2: True}
    for n, (E, tp) in enumerate(frs):
        r = RT + 8 * (n % NRT); f = AF + 4 * (n % NAF)
        st.wait(lg=f"kf{n}")
        for k in range(4):
            st(f"v_cvt_pk_bf16_f32 v{f+k}, v{r+2*k}, v{r+2*k+1}")
        if n + NRT < 12: rd(n + NRT)
        q = PQ + 8 * (tp >> 1) + 4 * (tp & 1)
        d = DT + 16 * E
        cin = "0" if first[E] else f"v[{d}:{d+15}]"
        first[E] = False
        st(f"v_mfma_f32_32x32x16_bf16 v[{d}:{d+15}], v[{f}:{f+3}], v[{q}:{q+3}], {cin}")
    d2 = DT + 32
    for h in range(4):
        st(f"v_add_f32 v{RD+h}, s{S_EPS}, v{d2+8+h}")
    for h in range(4):
        st(f"v_rcp_f32 v{RD+h}, v{RD+h}")
    st(f"v_cndmask_b32 v{RD+4}, v{RD+0}, v{RD+1}, s[{S_HALF}:{S_HALF+1}]")
    st(f"v_cndmask_b32 v{RD+5}, v{RD+2}, v{RD+3}, s[{S_HALF}:{S_HALF+1}]")
    sel = {0: RD, 1: RD, 2: RD + 4, 3: RD + 1, 4: RD + 1, 5: RD + 2, 6: RD + 2, 7: RD + 5, 8: RD + 3, 9: RD + 3}
    for hb in range(5):
        a = DT + 16 * (hb >> 1) + 8 * (hb & 1)
        for i in range(8):
            Q = 2 * hb + (i >> 2)
            st(f"v_mul_f32 v{a+i}, v{a+i}, v{sel[Q]}")
        for p in range(4):
            st(f"v_cvt_pk_bf16_f32 v{a+p}, v{a+2*p}, v{a+2*p+1}")
        st(f"buffer_store_dwordx4 v[{a}:{a+3}], v{V_OH}, s[{S_WS}:{S_WS+3}], s{S_O+hb} offen{ST_FLAGS}", tag="ost")

V_OH = TMP + 38

def o_epilogue_B(st, L):
    q_epilogue_B(st, L)
    stamp(st, 4)
    st(f"v_mov_b32 v{V_OH}, v{V_H}")
    o_block_B(st, L, (X + 128, X + 48, 4, X, 4, X + 80, X + 140), "kvp")

def fmt_setup(st, L):
    st("s_lshl_b32 s40, s2, 2")
    st(f"s_add_u32 s40, s40, s{S_WAVE}")
    st("s_mul_i32 s48, s40, 52429")
    st("s_lshr_b32 s48, s48, 19")
    st("s_mul_i32 s41, s48, 10")
    st("s_sub_u32 s47, s40, s41")
    st("s_lshl_b32 s45, s48, 5")
    st("s_add_u32 s46, s45, 16")
    st(f"s_mov_b32 s{S_FMT}, s{P_W2}")
    st(f"s_mov_b32 s{S_FMT+1}, s{P_W2+1}")
    st(f"s_mov_b32 s{S_FMT+2}, {W2_BYTES}")
    st(f"s_mov_b32 s{S_FMT+3}, 0x20000")
    st("s_cmp_lt_u32 s48, 54")
    st(f"s_cbranch_scc1 {L}_rows")
    st(f"s_mov_b32 s{S_FMT}, s{P_WO}")
    st(f"s_mov_b32 s{S_FMT+1}, s{P_WO+1}")
    st(f"s_mov_b32 s{S_FMT+2}, {WO_BYTES}")
    st("s_sub_u32 s42, s48, 54")
    st("s_mul_i32 s43, s42, 52429")
    st("s_lshr_b32 s43, s43, 18")
    st("s_mul_i32 s41, s43, 5")
    st("s_sub_u32 s42, s42, s41")
    st("s_mul_i32 s43, s43, 160")
    T0 = [0, 32, 64, 80, 112]; T1 = [16, 48, 144, 96, 128]
    st(f"s_mov_b32 s45, {T0[0]}")
    st(f"s_mov_b32 s46, {T1[0]}")
    for f in range(1, 5):
        st(f"s_cmp_eq_u32 s42, {f}")
        st(f"s_cselect_b32 s45, {T0[f]}, s45")
        st(f"s_cselect_b32 s46, {T1[f]}, s46")
    st("s_add_u32 s45, s45, s43")
    st("s_add_u32 s46, s46, s43")
    st.label(f"{L}_rows")
    st("s_lshl_b32 s41, s47, 7")
    for i in range(4):
        st(f"s_add_u32 s42, s{45 + (i >> 1)}, {8*(i&1)}")
        st("s_mul_i32 s42, s42, 1280")
        st(f"s_add_u32 s{96+i}, s42, s41")
    st("s_cmp_ge_u32 s40, 740")
    st(f"s_cselect_b32 s{S_FMT+2}, 0, s{S_FMT+2}")
    st("s_cselect_b32 s43, 0x40000000, 0")
    for j in range(4):
        st("s_lshl_b32 s41, s47, 2")
        st(f"s_add_u32 s41, s41, {j}")
        st("s_mul_i32 s42, s41, 52429")
        st("s_lshr_b32 s42, s42, 18")
        st("s_mul_i32 s45, s42, 5")
        st("s_sub_u32 s41, s41, s45")
        st(f"s_mul_i32 s42, s42, {NKB}")
        st("s_add_u32 s42, s42, s48")
        st("s_mul_i32 s42, s42, 5")
        st("s_add_u32 s42, s42, s41")
        st("s_lshl_b32 s42, s42, 10")
        st("s_add_u32 s42, s42, s43")
        st(f"s_add_u32 s{SFD[j]}, s42, {W2F_OFF}")


def fmt_dma_ops():
    g = Stream()
    v = V_FMT
    for i in range(4):
        g(f"s_add_u32 m0, s{S_FTM}, {1024*i}")
        g(f"buffer_load_dwordx4 v{v}, s[{S_FMT}:{S_FMT+3}], s{96+i} offen lds", tag="ft")
    return g.ops

def fmt_addr(st):
    v = V_FMT; l = V_LANE; a = TMP + 34
    st(f"v_lshrrev_b32 v{v}, 3, v{l}")
    st(f"v_mul_u32_u24 v{v}, 1280, v{v}")
    st(f"v_and_b32 v{a}, 7, v{l}")
    st(f"v_lshl_add_u32 v{v}, v{a}, 4, v{v}")
    st(f"s_lshl_b32 s{S_FTM}, s{S_WAVE}, 12")
    st(f"s_add_u32 s{S_FTM}, s{S_FTM}, {FT}")
    st(f"v_lshrrev_b32 v{a}, 4, v{l}")
    st(f"v_lshrrev_b32 v{v+1}, 1, v{a}")
    st(f"v_and_b32 v{a}, 1, v{a}")
    st(f"v_lshlrev_b32 v{v+1}, 4, v{v+1}")
    st(f"v_lshl_add_u32 v{v+1}, v{a}, 2, v{v+1}")
    st(f"v_bfe_u32 v{a}, v{l}, 2, 2")
    st(f"v_add_u32 v{v+1}, v{v+1}, v{a}")
    st(f"v_lshlrev_b32 v{v+1}, 7, v{v+1}")
    st(f"v_and_b32 v{a}, 3, v{l}")
    st(f"v_lshl_add_u32 v{v+1}, v{a}, 3, v{v+1}")
    st(f"v_add_u32 v{v+1}, s{S_FTM}, v{v+1}")
    st(f"v_lshlrev_b32 v{v+2}, 4, v{l}")

def fmt_finish_groups():
    G = []
    v = V_FMT; D0 = TMP + 8
    for j in range(4):
        s = Stream()
        if j == 0: s.wait(vm="ft")
        s(f"ds_read_b64_tr_b16 v[{D0+4*j}:{D0+4*j+1}], v{v+1} offset:{32*j}", tag=f"fr{j}")
        s(f"ds_read_b64_tr_b16 v[{D0+4*j+2}:{D0+4*j+3}], v{v+1} offset:{32*j+1024}", tag=f"fr{j}")
        G.append(s.ops)
    ST = []
    for j in range(4):
        s = Stream()
        s.wait(lg=f"fr{j}")
        s(f"buffer_store_dwordx4 v[{D0+4*j}:{D0+4*j+3}], v{v+2}, s[{S_WS}:{S_WS+3}], s{SFD[j]} offen{ST_FLAGS}", tag="fst")
        ST.append(s.ops)
    return G, ST

XREG0 = SLOT
def x_region(j):
    return XREG0 + 16384 * (j if j < 8 else j - 5)

def x_phase(st, L, hook):
    l = V_LANE
    vXa, vXb, vXR, SUM, SQ = TMP + 4, TMP + 5, TMP + 6, TMP + 14, TMP + 18
    def chunk_ops(j):
        g = Stream()
        for i in range(4):
            g(f"s_add_u32 s{S_T+1}, s{S_XB}, {8*i*1280 + 128*j}")
            g(f"s_add_u32 m0, s{S_XM}, {x_region(j) + 1024*i}")
            g(f"buffer_load_dwordx4 v{vXa + (i & 1)}, s[{S_X}:{S_X+3}], s{S_T+1} offen lds", tag=f"X{j}")
        return g.ops
    def chunk(j): st.ops.extend(chunk_ops(j))
    if TOUCH:
        st(f"s_and_b32 s40, s{S_G}, 3")
        st("s_lshr_b32 s41, s2, 7")
        st("s_lshl_b32 s41, s41, 2")
        st("s_add_u32 s40, s40, s41")
        st("s_mul_i32 s40, s40, 20480")
        st(f"s_mul_i32 s41, s{S_R}, 163840")
        st("s_add_u32 s40, s40, s41")
        st(f"v_lshlrev_b32 v{TMP+22}, 4, v0")
        for i in range(5):
            st(f"buffer_load_dwordx4 v[{TMP+24}:{TMP+27}], v{TMP+22}, s[{S_X}:{S_X+3}], s40 offen", tag="touch")
            if i < 4: st("s_add_u32 s40, s40, 4096")
    st(f"v_lshrrev_b32 v{TMP}, 3, v{l}")
    st(f"v_lshrrev_b32 v{TMP+1}, 4, v{l}")
    st(f"v_and_b32 v{TMP+2}, 7, v{l}")
    st(f"v_xor_b32 v{TMP+2}, v{TMP+2}, v{TMP+1}")
    st(f"v_mul_u32_u24 v{TMP}, 1280, v{TMP}")
    st(f"v_lshl_add_u32 v{vXa}, v{TMP+2}, 4, v{TMP}")
    st(f"v_xor_b32 v{TMP+2}, 4, v{TMP+2}")
    st(f"v_lshl_add_u32 v{vXb}, v{TMP+2}, 4, v{TMP}")
    for j in range(2): chunk(j)
    stamp(st, 1, "x")
    hook("setup")
    st(f"v_and_b32 v{TMP}, 31, v{l}")
    st(f"v_bfe_u32 v{TMP+1}, v{l}, 1, 3")
    st(f"v_lshrrev_b32 v{TMP+2}, 5, v{l}")
    st(f"v_lshlrev_b32 v{TMP}, 7, v{TMP}")
    st(f"v_add_u32 v{TMP}, s{S_XM}, v{TMP}")
    for tt in range(4):
        st(f"v_add_u32 v{TMP+3}, {2*tt}, v{TMP+2}")
        st(f"v_xor_b32 v{TMP+3}, v{TMP+3}, v{TMP+1}")
        st(f"v_lshl_add_u32 v{vXR+tt}, v{TMP+3}, 4, v{TMP}")
        st(f"v_add_u32 v{vXR+4+tt}, {XREG0}, v{vXR+tt}")
    for tt in range(4):
        st(f"v_add_u32 v{vXR+tt}, {XREG0 + 65536}, v{vXR+tt}")
    SUM, SQ = TMP + 14, TMP + 18
    for k in range(4):
        st(f"v_mov_b32 v{SUM+k}, 0")
        st(f"v_mov_b32 v{SQ+k}, 0")
    stamp(st, 2, "x")
    for j in range(2, 5): chunk(j)
    stamp(st, 3, "x")
    def stats(j, q):
        for i in range(16):
            if i % 2 == 0:
                while q:
                    op = q.pop(0); st.ops.append(op)
                    if op.kind == "vmem": break
            r = X + 16 * j + i
            st(f"v_dot2c_f32_bf16 v{SUM+(i&3)}, 0x3f803f80, v{r}")
            st(f"v_dot2c_f32_bf16 v{SQ+(i&3)}, v{r}, v{r}")
    def reads(j):
        off = x_region(j) - XREG0
        base = vXR + 4
        if off >= 65536: base = vXR; off -= 65536
        for tt in range(4):
            r = X + 16 * j + 4 * tt
            st(f"ds_read_b128 v[{r}:{r+3}], v{base+tt} offset:{off}", tag=f"xr{j}")
    q = []
    for j in range(10):
        st.wait(vm=f"X{j}")
        if j == 0: stamp(st, 4, "x")
        if j == 9: stamp(st, 5, "x")
        reads(j)
        if j > 0:
            st.wait(lg=f"xr{j-1}")
            if j + 4 <= 9: q += chunk_ops(j + 4)
            if j == 6:
                st("s_barrier")
                q += hook("g0")
            if j == 7: q += hook("g12")
            stats(j - 1, q)
    st.ops.extend(q); q = []
    st.wait(lg="xr9")
    stats(9, [])
    st(f"v_add_f32 v{SUM}, v{SUM}, v{SUM+1}")
    st(f"v_add_f32 v{SUM+2}, v{SUM+2}, v{SUM+3}")
    st(f"v_add_f32 v{SQ}, v{SQ}, v{SQ+1}")
    st(f"v_add_f32 v{SQ+2}, v{SQ+2}, v{SQ+3}")
    st(f"v_add_f32 v{SUM}, v{SUM}, v{SUM+2}")
    st(f"v_add_f32 v{SQ}, v{SQ}, v{SQ+2}")
    st(f"v_mov_b32 v{SUM+1}, v{SUM}")
    st(f"v_mov_b32 v{SQ+1}, v{SQ}")
    st(f"v_permlane32_swap_b32 v{SUM}, v{SUM+1}")
    st(f"v_permlane32_swap_b32 v{SQ}, v{SQ+1}")
    st(f"v_add_f32 v{SUM}, v{SUM}, v{SUM+1}")
    st(f"v_add_f32 v{SQ}, v{SQ}, v{SQ+1}")
    st(f"v_mul_f32 v{SUM}, 0x3acccccd, v{SUM}")
    st(f"v_mul_f32 v{SQ}, 0x3acccccd, v{SQ}")
    st(f"v_fma_f32 v{SQ}, -v{SUM}, v{SUM}, v{SQ}")
    st(f"v_max_f32 v{SQ}, 0, v{SQ}")
    st(f"v_cvt_pk_bf16_f32 v{SUM}, v{SUM}, v{SQ}")
    st(f"v_and_b32 v{SQ}, 0xffff0000, v{SUM}")
    st(f"v_lshlrev_b32 v{SUM}, 16, v{SUM}")
    st(f"v_add_f32 v{SQ}, 0x3727c5ac, v{SQ}")
    st(f"v_cvt_pk_bf16_f32 v{SQ}, v{SQ}, v{SQ}")
    st(f"v_lshlrev_b32 v{SQ}, 16, v{SQ}")
    st(f"v_sqrt_f32 v{SQ}, v{SQ}")
    st(f"v_cvt_pk_bf16_f32 v{SQ}, v{SQ}, v{SQ}")
    st(f"v_lshlrev_b32 v{SQ}, 16, v{SQ}")
    st(f"v_rcp_f32 v{V_RS}, v{SQ}")
    st(f"v_mul_f32 v{V_C}, v{SUM}, v{V_RS}")
    st(f"v_sub_f32 v{V_C}, 0, v{V_C}")

def setup_common(st, L):
    st("s_cmp_ge_u32 s2, 256")
    st(f"s_cbranch_scc1 {L}_exit")
    stamp(st, 0)
    st("s_mov_b32 s3, 0")
    st(f"s_load_dwordx16 s[{KA}:{KA+15}], s[0:1], 0")
    st(f"s_load_dwordx2 s[{P_WS}:{P_WS+1}], s[0:1], {KA_WS}")
    st("v_lshrrev_b32 v1, 6, v0")
    st(f"v_and_b32 v{V_LANE}, 63, v0")
    st(f"v_readfirstlane_b32 s{S_WAVE}, v1")
    st("s_and_b32 s40, s2, 7")
    st("s_lshr_b32 s41, s2, 3")
    st("s_lshr_b32 s42, s40, 1")
    st("s_lshl_b32 s42, s42, 2")
    st("s_and_b32 s43, s41, 3")
    st(f"s_add_u32 s{S_R}, s42, s43")
    st("s_and_b32 s42, s40, 1")
    st("s_lshl_b32 s42, s42, 2")
    st("s_bfe_u32 s43, s41, 0x20002")
    st(f"s_add_u32 s{S_G}, s42, s43")
    st(f"s_lshl_b32 s42, s{S_R}, 2")
    st(f"s_add_u32 s42, s42, s{S_WAVE}")
    st(f"s_mul_i32 s{S_XB}, s42, {32*1280}")
    st(f"s_mul_i32 s{S_H}, s42, {2*NKB*1024}")
    st(f"s_add_u32 s{S_H}, s{S_H}, {HF_OFF}")
    st(f"s_lshl_b32 s{S_XM}, s{S_WAVE}, 12")
    st(f"s_mul_i32 s{S_M1}, s{S_WAVE}, 5120")
    st(f"s_mul_i32 s{S_M2}, s{S_WAVE}, 3072")
    st(f"s_lshl_b32 s{S_KV}, s{S_G}, 13")
    st(f"s_add_u32 s{S_KV}, s{S_KV}, {KV_OFF}")
    st.waitall(vm=False)
    srd(st, S_X, P_X, X_BYTES)
    srd(st, S_WS, P_WS, WS_USED)

def setup_late(st, L):
    l = V_LANE
    srd(st, S_DBG, P_DBG, 256)
    st(f"s_mov_b32 s{S_EPS}, 0x{EPS6:x}")
    st(f"s_mov_b32 s{S_L2E}, 0x{LOG2E:x}")
    st(f"s_mov_b32 s{S_HALF}, 0")
    st(f"s_mov_b32 s{S_HALF+1}, -1")
    st(f"s_mov_b32 s{S_HALF+2}, 0x0000ffff")
    st(f"s_mov_b32 s{S_HALF+3}, 0x0000ffff")
    a, b, c = FR, FR + 1, FR + 2
    st(f"v_lshrrev_b32 v{a}, 5, v{l}")
    st(f"v_lshlrev_b32 v{a}, 3, v{a}")
    st(f"v_bfe_u32 v{b}, v{l}, 2, 2")
    st(f"v_add_u32 v{a}, v{a}, v{b}")
    st(f"v_bfe_u32 v{b}, v{l}, 4, 1")
    st(f"v_lshlrev_b32 v{b}, 5, v{b}")
    st(f"v_and_b32 v{c}, 3, v{l}")
    st(f"v_lshl_add_u32 v{b}, v{c}, 3, v{b}")
    st(f"v_mul_u32_u24 v{c}, 320, v{a}")
    st(f"v_add_u32 v{V_T1}, v{c}, v{b}")
    st(f"v_add_u32 v{V_T1+1}, {3*SLOT}, v{V_T1}")
    st(f"v_mul_u32_u24 v{c}, 192, v{a}")
    st(f"v_add_u32 v{V_T2}, v{c}, v{b}")
    st(f"v_add_u32 v{V_T2+1}, {3*SLOT}, v{V_T2}")
    st(f"v_bfe_u32 v{a}, v{l}, 4, 1")
    st(f"v_mul_u32_u24 v{a}, {NKB*1024}, v{a}")
    st(f"v_and_b32 v{b}, 15, v{l}")
    st(f"v_lshl_add_u32 v{a}, v{b}, 4, v{a}")
    st(f"v_lshrrev_b32 v{b}, 5, v{l}")
    st(f"v_lshl_add_u32 v{V_H}, v{b}, 8, v{a}")

def dma_tables(st, typ):
    l = V_LANE
    a, b, c, d = FR, FR + 1, FR + 2, FR + 3
    if typ == "A":
        st(f"s_mul_i32 s40, s{S_G}, 160")
        st("s_add_u32 s40, s40, 1280")
        st(f"s_lshl_b32 s41, s{S_G}, 7")
    else:
        st(f"s_mul_i32 s44, s{S_G}, 5")
        st("s_add_u32 s44, s44, 16")
        st(f"s_cmp_eq_u32 s{S_G}, 6")
        st("s_cselect_b32 s44, 45, s44")
        st(f"s_cmp_eq_u32 s{S_G}, 7")
        st("s_cselect_b32 s44, 49, s44")
        st("s_lshl_b32 s40, s44, 6")
        st(f"s_mul_i32 s41, s{S_G}, 160")
    for i in range(5):
        st(f"v_add_u32 v{a}, {64*i}, v{l}")
        st(f"v_mul_u32_u24 v{b}, 3277, v{a}")
        st(f"v_lshrrev_b32 v{b}, 16, v{b}")
        st(f"v_mul_u32_u24 v{c}, 20, v{b}")
        st(f"v_sub_u32 v{c}, v{a}, v{c}")
        st(f"v_mul_u32_u24 v{b}, {3840 if typ == 'A' else 3456}, v{b}")
        st(f"v_lshl_add_u32 v{b}, v{c}, 4, v{b}")
        if typ == "A":
            st(f"v_cmp_le_u32 vcc, 10, v{c}")
            st(f"v_add_u32 v{d}, 1120, v{b}")
            st(f"v_cndmask_b32 v{b}, v{b}, v{d}, vcc")
        st(f"v_add_u32 v{V_D1+i}, s40, v{b}")
    for i in range(3):
        st(f"v_add_u32 v{a}, {64*i}, v{l}")
        st(f"v_mul_u32_u24 v{b}, 5462, v{a}")
        st(f"v_lshrrev_b32 v{b}, 16, v{b}")
        st(f"v_mul_u32_u24 v{c}, 12, v{b}")
        st(f"v_sub_u32 v{c}, v{a}, v{c}")
        if typ == "A":
            st(f"v_and_b32 v{c}, 7, v{c}")
        else:
            st(f"v_subrev_u32 v{d}, 10, v{c}")
            st(f"v_cmp_gt_u32 vcc, 10, v{c}")
            st(f"v_cndmask_b32 v{c}, v{d}, v{c}, vcc")
        st(f"v_mul_u32_u24 v{b}, {3456 if typ == 'A' else 3840}, v{b}")
        st(f"v_lshl_add_u32 v{b}, v{c}, 4, v{b}")
        st(f"v_add_u32 v{V_D2+i}, s41, v{b}")

def prefetch_weights(st, typ):
    v = TMP + 22
    sq, s1 = (S_W1, S_W2) if typ == "A" else (S_W2, S_W1)
    st(f"v_lshlrev_b32 v{v}, 4, v0")
    if WPREF:
        st("s_mul_i32 s40, s2, 9600")
        st("s_mul_i32 s41, s2, 8640")
        for i in range(3):
            st(f"buffer_load_dwordx4 v[{TMP+24}:{TMP+27}], v{v}, s[{sq}:{sq+3}], s40 offen", tag="pf")
            st("s_add_u32 s40, s40, 3200")
            st(f"buffer_load_dwordx4 v[{TMP+28}:{TMP+31}], v{v}, s[{s1}:{s1+3}], s41 offen", tag="pf")
            st("s_add_u32 s41, s41, 2880")

def prefetch_w2_ops():
    g = Stream()
    v = TMP + 22
    g(f"s_mov_b32 s{S_PF}, s{P_W2}")
    g(f"s_mov_b32 s{S_PF+1}, s{P_W2+1}")
    g(f"s_mov_b32 s{S_PF+2}, {W2_BYTES}")
    g(f"s_mov_b32 s{S_PF+3}, 0x20000")
    g(f"v_lshlrev_b32 v{v}, 4, v0")
    g("s_mul_i32 s43, s2, 8640")
    for i in range(3):
        g(f"buffer_load_dwordx4 v[{TMP+24}:{TMP+27}], v{v}, s[{S_PF}:{S_PF+3}], s43 offen", tag="pf")
        g("s_add_u32 s43, s43, 2880")
    g(f"s_mov_b32 s{S_PF}, s{P_WO}")
    g(f"s_mov_b32 s{S_PF+1}, s{P_WO+1}")
    g(f"s_mov_b32 s{S_PF+2}, {WO_BYTES}")
    g("s_mul_i32 s43, s2, 3200")
    g(f"buffer_load_dwordx4 v[{TMP+24}:{TMP+27}], v{v}, s[{S_PF}:{S_PF+3}], s43 offen", tag="pf")
    return g.ops

DUMP_XN = False
S2D = 3
S2FLAGS = " sc1"
S2ROT = True
OSTEP = 2
W2PF = False
FMT_STAGE = 1
VME_1, VME_A2, VME_B2 = 3, 2, 3
SAMEW = False
FUSED = False
TOUCH = True
NOFMT = False
NONORM = False
WPREF = True
def dump_xn(st):
    st(f"v_lshlrev_b32 v{TMP}, 4, v{V_LANE}")
    st(f"s_lshl_b32 s40, s{S_R}, 2")
    st(f"s_add_u32 s40, s40, s{S_WAVE}")
    st("s_mul_i32 s40, s40, 40960")
    for t in range(40):
        st(f"buffer_store_dwordx4 v[{X+4*t}:{X+4*t+3}], v{TMP}, s[{S_WS}:{S_WS+3}], s40 offen")
        st("s_add_u32 s40, s40, 1024")

def s1_type(st, L, typ):
    l = V_LANE
    P = Passes(st, typ)
    def type_consts():
        if typ == "A":
            st(f"s_mul_i32 s40, s{S_WAVE}, 7168")
            st(f"s_add_u32 s40, s40, {KVP}")
            a, b = FR + 8, FR + 9
            st(f"v_and_b32 v{a}, 31, v{l}")
            st(f"v_lshrrev_b32 v{b}, 5, v{l}")
            st(f"v_lshlrev_b32 v{b}, 4, v{b}")
            st(f"v_add_u32 v{V_Z}, s40, v{b}")
            st(f"v_mul_u32_u24 v{a}, 80, v{a}")
            st(f"v_add_u32 v{a}, v{a}, v{V_Z}")
            st(f"v_subrev_u32 v{V_KVA}, 1280, v{a}")
            st(f"s_lshl_b32 s{S_T+8}, s{S_G}, 11")
            st(f"s_add_u32 s{S_T+8}, s{S_T+8}, s{S_H}")
        else:
            st("s_lshl_b32 s44, s44, 10")
            st(f"s_add_u32 s{S_T+8}, s44, s{S_H}")
            st(f"s_add_u32 s{S_T+9}, s{S_T+8}, 4096")
            st(f"s_lshr_b32 s40, s{S_G}, 1")
            st("s_mul_i32 s40, s40, 5120")
            st(f"s_add_u32 s40, s40, {54*1024}")
            st(f"s_add_u32 s40, s40, s{S_H}")
            st(f"s_bitcmp1_b32 s{S_G}, 0")
            ev = [0, 512, 1024, 1536, 2048]; od = [3072, 3584, 4096, 4608, 2560]
            for hb in range(5):
                st(f"s_mov_b32 s{S_O+hb}, {ev[hb]}")
                st(f"s_cmov_b32 s{S_O+hb}, {od[hb]}")
            for hb in range(5):
                st(f"s_add_u32 s{S_O+hb}, s{S_O+hb}, s40")
            a = FR + 8
            st(f"v_and_b32 v{a}, 31, v{l}")
            st(f"v_mul_u32_u24 v{a}, {KVP_PITCH}, v{a}")
            st(f"v_lshrrev_b32 v{a+1}, 5, v{l}")
            st(f"v_lshl_add_u32 v{a}, v{a+1}, 4, v{a}")
            st(f"v_add_u32 v{V_KVA}, {KVP}, v{a}")
            DUMMY = KVP + 96 * KVP_PITCH
            r = [a + k for k in range(8)]
            for i in range(2):
                st(f"v_add_u32 v{r[0]}, {256*i}, v0")
                st(f"v_mul_u32_u24 v{r[1]}, 625, v{r[0]}")
                st(f"v_lshrrev_b32 v{r[1]}, 16, v{r[1]}")
                st(f"v_mul_u32_u24 v{r[2]}, 105, v{r[1]}")
                st(f"v_sub_u32 v{r[2]}, v{r[0]}, v{r[2]}")
                st(f"v_mul_u32_u24 v{r[3]}, 13108, v{r[2]}")
                st(f"v_lshrrev_b32 v{r[3]}, 16, v{r[3]}")
                st(f"v_mul_u32_u24 v{r[4]}, 5, v{r[3]}")
                st(f"v_sub_u32 v{r[4]}, v{r[2]}, v{r[4]}")
                st(f"v_mul_u32_u24 v{r[5]}, 5, v{r[1]}")
                st(f"v_add_u32 v{r[4]}, v{r[4]}, v{r[5]}")
                st(f"v_lshlrev_b32 v{r[4]}, 4, v{r[4]}")
                st(f"v_mul_u32_u24 v{r[5]}, 20, v{r[1]}")
                st(f"v_add_u32 v{r[5]}, v{r[5]}, v{r[3]}")
                st(f"v_add_u32 v{r[6]}, 80, v{r[1]}")
                st(f"v_cmp_eq_u32 vcc, 20, v{r[3]}")
                st(f"v_cndmask_b32 v{r[5]}, v{r[5]}, v{r[6]}, vcc")
                st(f"v_mul_u32_u24 v{r[5]}, {KVP_PITCH}, v{r[5]}")
                st(f"v_add_u32 v{r[5]}, v{r[5]}, v{r[4]}")
                st(f"v_add_u32 v{r[5]}, {KVP}, v{r[5]}")
                st(f"v_add_u32 v{r[6]}, {4*KVP_PITCH}, v{r[5]}")
                st(f"v_mov_b32 v{r[7]}, {DUMMY}")
                st(f"v_cndmask_b32 v{r[6]}, v{r[7]}, v{r[6]}, vcc")
                st(f"v_cmp_gt_u32 vcc, 420, v{r[0]}")
                st(f"v_cndmask_b32 v{V_W+2*i}, v{r[7]}, v{r[5]}, vcc")
                st(f"v_cndmask_b32 v{V_W+2*i+1}, v{r[7]}, v{r[6]}, vcc")
    def hook(what):
        if what == "setup":
            setup_late(st, L)
            if typ == "A":
                srd(st, S_W1, P_WQKV, WQKV_BYTES); srd(st, S_W2, P_W1, W1_BYTES)
                st(f"s_mul_i32 s{S_K1}, s{S_WAVE}, {16*3840}")
                st(f"s_mul_i32 s{S_K2}, s{S_WAVE}, {16*3456}")
            else:
                srd(st, S_W1, P_W1, W1_BYTES); srd(st, S_W2, P_WQKV, WQKV_BYTES)
                st(f"s_mul_i32 s{S_K1}, s{S_WAVE}, {16*3456}")
                st(f"s_mul_i32 s{S_K2}, s{S_WAVE}, {16*3840}")
            fmt_setup(st, L + typ + "_fmt")
            fmt_addr(st)
            dma_tables(st, typ)
            type_consts()
        elif what == "g0":
            return P.group(0).ops
        elif what == "g12":
            ops = P.group(1).ops + P.group(2).ops
            g = Stream(); prefetch_weights(g, typ); ops += g.ops
            return ops
    if typ == "A":
        st(f"s_cmp_lg_u32 s{S_R}, 0")
        st(f"s_cbranch_scc1 {L}_nozero")
        for i in range(4): st(f"v_mov_b32 v{FR+i}, 0")
        st(f"v_lshlrev_b32 v{FR+4}, 4, v0")
        st(f"s_add_u32 s40, s{S_KV}, 4096")
        st(f"s_lshl_b32 s41, s{S_G}, 12")
        st(f"s_add_u32 s41, s41, {FL_OFF}")
        st(f"buffer_store_dwordx4 v[{FR}:{FR+3}], v{FR+4}, s[{S_WS}:{S_WS+3}], s{S_KV} offen sc0 sc1", note="cond")
        st(f"buffer_store_dwordx4 v[{FR}:{FR+3}], v{FR+4}, s[{S_WS}:{S_WS+3}], s40 offen sc0 sc1", note="cond")
        st(f"buffer_store_dwordx4 v[{FR}:{FR+3}], v{FR+4}, s[{S_WS}:{S_WS+3}], s41 offen sc0 sc1", note="cond")
        st("s_nop 1")
        st.label(f"{L}_nozero")
    x_phase(st, L, hook)
    stamp(st, 1)
    stamp(st, 6, "x")
    if typ == "A":
        def zsig(st):
            st(f"s_cmp_lg_u32 s{S_R}, 0")
            st(f"s_cbranch_scc1 {L}_nozsig")
            signal(st, L, "z", [f"s_mov_b32 s{S_T}, 0"], S_DBG, lanes=4, lane_stride=64)
            st.label(f"{L}_nozsig")
        P.after_barrier[0] = zsig
    flush(st, norm_groups(0)); flush(st, norm_groups(1))
    P.start(0)
    stamp(st, 2)
    fill = []
    for t in range(2, 40): fill += ([] if NONORM else norm_groups(t))

    if W2PF:
        prev0 = P.after_barrier.get(0)
        def hook0(st_):
            if prev0: prev0(st_)
            P.extra.extend(prefetch_w2_ops())
        P.after_barrier[0] = hook0
    rd_groups, st_groups = fmt_finish_groups()
    if not NOFMT:
        P.after_barrier[FMT_STAGE] = lambda st_: P.extra.extend(fmt_dma_ops())
        P.inject[5 * (4 * FMT_STAGE + 16)] = rd_groups
        P.inject[5 * (4 * FMT_STAGE + 18)] = st_groups
    P.after_barrier[4] = lambda st_: preload(st_, L, "initp", INIT_SPEC, S_DBG)
    P.after_barrier[6] = lambda st_: poll(st_, L, "init", INIT_SPEC, 8, S_DBG, preloaded="initp")
    if FUSED:
        def fst_wait(st_):
            assert NOFMT or (not P.injq and not P.inject), "format stores not issued"
            st_.wait(vm="fst")
        P.before_barrier[FMT_STAGE + 7] = fst_wait
        P.after_barrier[FMT_STAGE + 7] = lambda st_: signal(st_, L, "w2", [f"s_and_b32 s{S_T}, s2, 7", f"s_lshl_b32 s{S_T}, s{S_T}, 7", f"s_add_u32 s{S_T}, s{S_T}, {FL_OFF + 128*FL_W2}"], S_WS)
    if typ == "A":
        rest = P.run(0, 200, fill, per_slot=4, lookahead_to=200, vm_takes_slot=False)
        assert not rest
        stamp(st, 3)
        stamp(st, 6, "p1")
        if DUMP_XN: dump_xn(st)
        kv_epilogue_A(st, L + "_A")
        stamp(st, 5)
        P.start(200)
        P.run(200, 240)
        P.drain_groups()
        st.wait(vm="kvat")
        st("s_barrier")
        signal(st, L, "kv", flag_off(FL_KVC, S_G), S_WS)
        P.run(240, 280)
        stamp(st, 6)
        if FUSED: preload(st, L, "startp", START_SPEC, S_WS)
        for b in range(2):
            flush(st, relu_pack_store(ACC2 + 16 * b, TMP + 8 + 8 * b, TMP, S_T + 8, 1024 * b))
        if FUSED: s2_part(st, L, "A")
    else:
        if FUSED:
            def hb_wait(st_):
                n = sum(1 for o in st_.ops[b_start:] if o.tag == "hst")
                assert n == 10, n
                st_.wait(vm="hst")
            b_start = len(st.ops)
            P.before_barrier[18] = hb_wait
            P.after_barrier[18] = lambda st_: signal(st_, L, "hb", flag_off(FL_HB, S_R), S_WS)
        rest = P.run(0, 200, fill, per_slot=4, vm_takes_slot=False)
        assert not rest
        stamp(st, 3)
        stamp(st, 6, "p1")
        fill = []
        for b in range(5):
            fill += relu_pack_store(ACC1 + 16 * b, TMP + 8 + 8 * (b & 1), TMP, S_T + 8 if b < 4 else S_T + 9, 1024 * (b & 3))
        P.run(200, 204, per_slot=0)
        rest = P.run(204, 280, fill, per_slot=3)
        flush(st, rest)
        P.run(280, 300)
        P.drain_groups()
        if not FUSED: preload(st, L, "kvp", flag_spec(FL_KVC, S_G), S_WS)
        P.run(300, 320)
        if FUSED:
            preload(st, L, "startp", START_SPEC, S_WS)
            q_epilogue_B(st, L + "_B")
            st(f"v_mov_b32 v{V_OH}, v{V_H}")
            stamp(st, 4)
            s2_part(st, L, "B")
        else:
            o_epilogue_B(st, L + "_B")

def s2_part(st, L, typ):
    stamp(st, 1, "s2")
    srd(st, S_FMT, P_OUT, OUT_BYTES)
    st(f"s_lshl_b32 s30, s{S_R}, 1")
    if typ == "B": st("s_add_u32 s30, s30, 1")
    quads = [(16, 10, True), (0, 4, False), (54, 5, False)]
    st("s_and_b32 s31, s30, 7")
    st(f"s_and_b32 s{S_T}, s{S_G}, 3")
    st(f"s_lshl_b32 s{S_T}, s{S_T}, 1")
    st(f"s_add_u32 s31, s31, s{S_T}")
    if not S2ROT: st("s_mov_b32 s31, 0")
    def start_check(st_):
        poll(st_, L, "start", START_SPEC, (32, 8), S_WS, preloaded="startp")
        st_("s_barrier")
        stamp(st_, 2, "s2")
    def own_signal(st_):
        st_.wait(vm="hst" if typ == "A" else "ost")
        st_("s_barrier")
        signal(st_, L, "own", flag_off(FL_HA if typ == "A" else FL_OB, S_R), S_WS)
    def check(name, line, pre):
        def f(st_):
            poll(st_, L, name, flag_spec(line, S_R), 8, S_WS, preloaded=pre)
            st_("s_barrier")
        return f
    def seq(*fs):
        def f(st_):
            for x in fs: x(st_)
        return f
    pre_ha = lambda st_: preload(st_, L, "hap", flag_spec(FL_HA, S_R), S_WS)
    pre_ob = lambda st_: preload(st_, L, "obp", flag_spec(FL_OB, S_R), S_WS)
    hooks = {}
    def add(step, kind, fn):
        h = hooks.setdefault(step, {})
        h[kind] = seq(h[kind], fn) if kind in h else fn
    add(0, "pre", start_check)
    add(10, "pre", check("ha", FL_HA, "hap"))
    add(14 - S2D - 2, "post", pre_ob)
    add(14, "pre", check("ob", FL_OB, "obp"))
    if typ == "A":
        hooks[("p", min(2, S2D - 1))] = own_signal
        add(10 - S2D - 2, "post", pre_ha)
    else:
        add(max(OSTEP - 2, 0), "post", lambda st_: preload(st_, L, "kvp", flag_spec(FL_KVC, S_G), S_WS))
        add(OSTEP, "post", lambda st_: o_block_B(st_, L, (TMP + 20, FR, 2, FR + 16, 2, 208, TMP + 32), "kvp"))
        add(max(OSTEP, 10 - S2D - 2), "post", pre_ha)
        add(OSTEP + 2, "post", own_signal)
    R = dict(ws=S_WS, x=S_X, out=S_FMT, c=S_G, rho=30, w=S_WAVE, lane=V_LANE, vA=3, vB=4, vL=5, vX=8, vR=10,
             acc=128, aring=0, sA=24, sB=28, sT=S_T + 4, res=96, tmp=112, stamp0=3, sgroup="s2", rot=31, sQ=36)
    s2b.s2b_body(st, R, quads=quads, D=S2D, ldflags=S2FLAGS, hooks=hooks)

def gen_k1e(name="proj_kernel"):
    st = Stream()
    L = name
    setup_common(st, L)
    st("s_cmp_ge_u32 s2, 128")
    st(f"s_cbranch_scc1 {L}_B")
    s1_type(st, L + "_a", "A")
    st(f"s_branch {L}_end")
    st.label(f"{L}_B")
    s1_type(st, L + "_b", "B")
    st.label(f"{L}_end")
    stamp_flush(st, 0, S_WS, S_WAVE, 7)
    st.label(f"{L}_exit")
    st("s_endpgm")
    txt, npad = kernel_text(name, st)
    print("k1e: hazard pad states", npad)
    return txt, descriptor(name, 512, 256), dict(grid=256, block=256, lds=K1_LDS)
```

```python
from common import *

RED_BYTES = 4 * 15 * 1024

def s2_order():
    return [(4 * i, 4) for i in range(18)] + [(72, 2)]

def s2b_body(st, R, quads=None, D=5, ldflags="", hooks=None):
    segs = quads or [(0, 19, True)]
    steps = [(k, li) for k, (b, nq, half) in enumerate(segs) for li in range(nq)]
    hooks = hooks or {}
    sws, sx, so = R["ws"], R["x"], R["out"]
    lane = R["lane"]; w = R["w"]
    ACC = R["acc"]; AR = R["aring"]; NS = D + 1
    vA, vB, vL, vX, vR = R["vA"], R["vB"], R["vL"], R["vX"], R["vR"]
    sA, sB, sT = R["sA"], R["sB"], R["sT"]
    RES = R["res"]; RED = R.get("red", 0)
    n = len(steps)
    sQ = R.get("sQ"); rot = R.get("rot")
    for j in range(4):
        st(f"s_add_u32 s{sT}, s{w}, {j}")
        st(f"s_and_b32 s{sT}, s{sT}, 3")
        st(f"s_lshl_b32 s{sT+1}, s{R['rho']}, 2")
        st(f"s_add_u32 s{sT}, s{sT}, s{sT+1}")
        st(f"s_mul_i32 s{sT}, s{sT}, {NKB*1024}")
        st(f"s_add_u32 s{sA+j}, s{sT}, {HF_OFF}")
    st(f"s_mul_i32 s{sB}, s{R['c']}, {NKB*5120}")
    st(f"s_add_u32 s{sB}, s{sB}, {W2F_OFF}")
    st(f"s_add_u32 s{sB+1}, s{sB}, 4096")
    st(f"v_lshlrev_b32 v{vL}, 4, v{lane}")
    st(f"s_lshl_b32 s{sT}, s{w}, 10")
    st(f"v_add_u32 v{vL+1}, s{sT}, v{vL}")
    st(f"s_mul_i32 s{sT}, s{w}, 5120")
    st(f"v_add_u32 v{vL+2}, s{sT}, v{vL}")
    st(f"s_cmp_ge_u32 s{w}, 2")
    st(f"s_cselect_b32 s{sT+2}, 0x40000000, 0")

    sQv = sQ if sQ is not None else 44
    def slot(i): return AR + 36 * (i % NS)
    def group(i):
        g = Stream()
        if i >= n: return g
        k, li = steps[i]
        base, nq, half = segs[k]
        r = slot(i)
        if rot is None:
            g(f"s_mov_b32 s{sQv}, {li}")
        elif li == 0:
            g(f"s_mul_i32 s{sT}, s{rot}, {-(-65536 // nq)}")
            g(f"s_lshr_b32 s{sT}, s{sT}, 16")
            g(f"s_mul_i32 s{sT}, s{sT}, {nq}")
            g(f"s_sub_u32 s{sQv}, s{rot}, s{sT}")
        else:
            g(f"s_add_u32 s{sQv}, s{sQv}, 1")
            g(f"s_cmp_eq_u32 s{sQv}, {nq}")
            g(f"s_cselect_b32 s{sQv}, 0, s{sQv}")
        g(f"s_lshl_b32 s{sT}, s{sQv}, 2")
        g(f"s_add_u32 s{sT}, s{sT}, {base}")
        g(f"s_mul_i32 s{sT+1}, s{sT}, 5120")
        g(f"s_lshl_b32 s{sT}, s{sT}, 10")
        if half:
            g(f"s_cmp_eq_u32 s{sQv}, {nq-1}")
            g(f"s_cselect_b32 s{sQv+1}, s{sT+2}, 0")
            g(f"s_add_u32 s{sT}, s{sT}, s{sQv+1}")
            g(f"s_add_u32 s{sT+1}, s{sT+1}, s{sQv+1}")
        g(f"v_add_u32 v{vA}, s{sT}, v{vL+1}")
        g(f"v_add_u32 v{vB}, s{sT+1}, v{vL+2}")
        for jj in range(5):
            sb = sB if jj < 4 else sB + 1
            g(f"buffer_load_dwordx4 a[{r+16+4*jj}:{r+16+4*jj+3}], v{vB}, s[{sws}:{sws+3}], s{sb} offen offset:{1024*(jj&3)}{ldflags}", tag=f"S{i}")
        for j in range(4):
            g(f"buffer_load_dwordx4 a[{r+4*j}:{r+4*j+3}], v{vA}, s[{sws}:{sws+3}], s{sA+j} offen{ldflags}", tag=f"S{i}")
        return g

    def res_loads():
        st(f"v_and_b32 v{vX}, 15, v{lane}")
        st(f"s_lshl_b32 s{sT}, s{R['rho']}, 6")
        st(f"s_lshl_b32 s{sT+1}, s{w}, 4")
        st(f"s_add_u32 s{sT}, s{sT}, s{sT+1}")
        st(f"v_add_u32 v{vX}, s{sT}, v{vX}")
        st(f"v_mul_u32_u24 v{vX}, 1280, v{vX}")
        st(f"v_lshrrev_b32 v{vX+1}, 4, v{lane}")
        st(f"v_lshl_add_u32 v{vX}, v{vX+1}, 3, v{vX}")
        st(f"s_mul_i32 s{sT}, s{R['c']}, 160")
        st(f"v_add_u32 v{vX}, s{sT}, v{vX}")
        for jj in range(5):
            st(f"buffer_load_dwordx2 v[{RES+2*jj}:{RES+2*jj+1}], v{vX}, s[{sx}:{sx+3}], 0 offen offset:{32*jj}", tag="res")

    for i in range(D):
        if i in hooks and hooks[i].get("pre"): hooks[i]["pre"](st)
        st.extend(group(i))
        if ("p", i) in hooks: hooks[("p", i)](st)
    res_loads()
    for j in range(1, 4):
        st(f"s_add_u32 s{sT}, s{w}, {j}")
        st(f"s_and_b32 s{sT}, s{sT}, 3")
        st(f"s_mul_i32 s{sT}, s{sT}, 15360")
        st(f"s_add_u32 s{sT}, s{sT}, {RED + (j-1)*5120}")
        st(f"v_add_u32 v{vR+j-1}, s{sT}, v{vL}")
    st(f"s_mul_i32 s{sT}, s{w}, 15360")
    st(f"s_add_u32 s{sT}, s{sT}, {RED}")
    st(f"v_add_u32 v{vR+3}, s{sT}, v{vL}")
    stamp(st, R.get("stamp0", 1), R.get("sgroup", "main"))
    for i in range(n):
        if i in (5, 9, 10, 14): stamp(st, {5: 2, 9: 4, 10: 5, 14: 6}[i], "s2b")
        if i == 0: stamp(st, 1, "s2b")
        if i + D in hooks and hooks[i + D].get("pre"): hooks[i + D]["pre"](st)
        if i == 5: stamp(st, 3, "s2b")
        gq = group(i + D).ops
        st.wait(vm=f"S{i}")
        r = slot(i)
        m = 0
        for j in range(4):
            for jj in range(5):
                acc = ACC + 20 * j + 4 * jj
                cin = "0" if i == 0 else f"v[{acc}:{acc+3}]"
                st(f"v_mfma_f32_16x16x32_bf16 v[{acc}:{acc+3}], a[{r+16+4*jj}:{r+16+4*jj+3}], a[{r+4*j}:{r+4*j+3}], {cin}")
                m += 1
                if m % 2 == 0:
                    while gq:
                        op = gq.pop(0); st.ops.append(op)
                        if op.kind == "vmem": break
        st.ops.extend(gq)
        if i in hooks and hooks[i].get("post"): hooks[i]["post"](st)
    stamp(st, R.get("stamp0", 1) + 1, R.get("sgroup", "main"))
    if R.get("pre_red"): R["pre_red"](st)
    for j in range(1, 4):
        for jj in range(5):
            acc = ACC + 20 * j + 4 * jj
            st(f"ds_write_b128 v{vR+j-1}, v[{acc}:{acc+3}] offset:{1024*jj}", tag="rw")
    st.wait(lg="rw")
    st("s_barrier")
    T = ACC + 20
    for k in range(15):
        st(f"ds_read_b128 v[{T+4*k}:{T+4*k+3}], v{vR+3} offset:{1024*k}", tag=f"rr{k}")
    st.wait(vm="res")
    for jj in range(5):
        acc = ACC + 4 * jj
        for js in range(3):
            k = js * 5 + jj
            st.wait(lg=f"rr{k}")
            for i in range(4):
                st(f"v_add_f32 v{acc+i}, v{acc+i}, v{T+4*k+i}")
    T2 = R["tmp"]
    for jj in range(5):
        acc = ACC + 4 * jj; r = RES + 2 * jj
        st(f"v_lshlrev_b32 v{T2}, 16, v{r}")
        st(f"v_and_b32 v{T2+1}, 0xffff0000, v{r}")
        st(f"v_lshlrev_b32 v{T2+2}, 16, v{r+1}")
        st(f"v_and_b32 v{T2+3}, 0xffff0000, v{r+1}")
        for i in range(4):
            st(f"v_add_f32 v{T2+i}, v{T2+i}, v{acc+i}")
        st(f"v_cvt_pk_bf16_f32 v{r}, v{T2}, v{T2+1}")
        st(f"v_cvt_pk_bf16_f32 v{r+1}, v{T2+2}, v{T2+3}")
        st(f"buffer_store_dwordx2 v[{r}:{r+1}], v{vX}, s[{so}:{so+3}], 0 offen offset:{32*jj}")

def gen_k2b(name="out_kernel", D=5):
    st = Stream()
    L = name
    st("s_cmp_ge_u32 s2, 256")
    st(f"s_cbranch_scc1 {L}_exit")
    stamp(st, 0)
    st(f"s_load_dwordx2 s[4:5], s[0:1], {KA_X}")
    st(f"s_load_dwordx2 s[6:7], s[0:1], {KA_OUT}")
    st(f"s_load_dwordx2 s[12:13], s[0:1], {KA_WS}")
    st("v_lshrrev_b32 v1, 6, v0")
    st("v_and_b32 v2, 63, v0")
    st("v_readfirstlane_b32 s14, v1")
    st("s_and_b32 s28, s2, 7")
    st("s_lshr_b32 s29, s2, 3")
    st("s_and_b32 s30, s28, 1")
    st("s_lshl_b32 s30, s30, 2")
    st("s_and_b32 s31, s29, 3")
    st("s_add_u32 s30, s30, s31")
    st("s_lshr_b32 s31, s28, 1")
    st("s_lshl_b32 s31, s31, 3")
    st("s_lshr_b32 s29, s29, 2")
    st("s_add_u32 s31, s31, s29")
    st.waitall(vm=False)
    srd(st, 16, 4, X_BYTES)
    srd(st, 20, 12, WS_USED)
    srd(st, 24, 6, OUT_BYTES)
    R = dict(ws=20, x=16, out=24, c=30, rho=31, w=14, lane=2, vA=3, vB=4, vL=5, vX=8, vR=10,
             acc=16, aring=0, sA=32, sB=36, sT=40, res=96, tmp=112)
    s2b_body(st, R, D=D)
    st.label(f"{L}_end")
    stamp_flush(st, 2, 20, 14, 3)
    st.label(f"{L}_exit")
    st("s_endpgm")
    txt, npad = kernel_text(name, st)
    return txt, descriptor(name, 512, 256), dict(grid=256, block=256, lds=RED_BYTES)
```

```python
import sys, os
import common
if len(sys.argv) > 2 and sys.argv[2] == 'prof':
    common.PROF = True
    if len(sys.argv) > 3: common.STAMP_SET = sys.argv[3]
if os.environ.get('HWID'): common.HWID = True
from build import *
import k1e
k1e.FUSED = True
k1e.ST_FLAGS = " sc1"
if os.environ.get('WPREF') == '0': k1e.WPREF = False
if os.environ.get('TOUCH') == '0': k1e.TOUCH = False
if os.environ.get('FMT_STAGE'): k1e.FMT_STAGE = int(os.environ['FMT_STAGE'])
if os.environ.get('OSTEP'): k1e.OSTEP = int(os.environ['OSTEP'])
if os.environ.get('S2D'): k1e.S2D = int(os.environ['S2D'])
if 'S2FLAGS' in os.environ: k1e.S2FLAGS = os.environ['S2FLAGS']
if os.environ.get('S2ROT') == '0': k1e.S2ROT = False
for k in ('NOFMT', 'NONORM', 'SAMEW', 'W2PF'):
    if os.environ.get(k) == '1': setattr(k1e, k, True)
if os.environ.get('VME'): k1e.VME_1, k1e.VME_A2, k1e.VME_B2 = [int(x) for x in os.environ['VME'].split(',')]
name = common.NAME + "_kernel"
t, d, l = k1e.gen_k1e(name)
hdr = open("cdna_kernels/" + common.NAME + ".s.ref").read().split("; Override launch")[0]
out = hdr + f"; @launch grid=({l['grid']},1,1) block=({l['block']},1,1) lds={l['lds']}\n"
out += '.amdgcn_target "amdgcn-amd-amdhsa--gfx950"\n.text\n' + t + '.section .rodata,"a"\n' + d
open(sys.argv[1], "w").write(out)
```

```python
from common import *
import s2b, s2c

SLOT = 20480
NSLOT, DIST, LOOK = 6, 4, 4
NFR = LOOK + 2
KVP = NSLOT * SLOT
KVP_PITCH = 336
K1_LDS = 163840
FT = KVP
LOG2E = 0x3fb8aa3b
EPS6 = 0x358637bd

for c in range(320): assert (c * 3277) >> 16 == c // 20
for c in range(192): assert (c * 5462) >> 16 == c // 12
for c in range(512): assert (c * 625) >> 16 == c // 105
for c in range(105): assert (c * 13108) >> 16 == c // 5
for c in range(1024): assert (c * 5669) >> 22 == c // 740

V_LANE = 2
V_D1 = 3
V_D2 = 8
V_H = 11
V_RS, V_C = 12, 13
V_T1 = 14
FR = 16
TMP = 40
V_T2 = 88
V_KVA = 90
V_Z = 91
V_W = 91
V_FLAG = 95
V_FOFF = 1
X = 96
ACC1 = 0
ACC2 = 80
S_X = 4; S_FMT = 8
S_WAVE = 14; S_G = 15; S_R = 16; S_XB = 17; S_M1 = 18; S_M2 = 19
S_WS = 20; S_W1 = 24; S_W2 = 28; S_DBG = 32
S_K1 = 36; S_K2 = 37; S_H = 38; S_XM = 39; S_T = 40
S_O = 50
S_EPS = 56; S_L2E = 57; S_KV = 58; S_HALF = 60
KA = 64
P_X, P_WQKV, P_WO, P_W1, P_W2, P_OUT, P_DBG = 64, 66, 68, 72, 74, 76, 78
P_WS = 12
SFD = (100, 101, 70, 71)
S_FTM = 59
S_PF = 44
S_GB = 55
V_FMT = TMP + 36
ST_FLAGS = ""

def one(txt, **kw):
    s = Stream(); s(txt, **kw); return s.ops

def relu_pack_store(acc, P, T, sbase, imm):
    G = []
    for p in range(8):
        t = T + 2 * (p & 1)
        G.append(one(f"v_accvgpr_read_b32 v{t}, a{acc+2*p}"))
        G.append(one(f"v_accvgpr_read_b32 v{t+1}, a{acc+2*p+1}"))
        G.append(one(f"v_cvt_pk_bf16_f32 v{P+p}, v{t}, v{t+1}"))
        G.append(one(f"v_pk_max_i16 v{P+p}, v{P+p}, 0"))
    for u in range(2):
        G.append(one(f"buffer_store_dwordx4 v[{P+4*u}:{P+4*u+3}], v{V_H}, s[{S_WS}:{S_WS+3}], s{sbase} offen offset:{imm+512*u}{ST_FLAGS}", tag="hst"))
    return G

def phi_groups(regs, tbase, ntmp=8):
    G = []
    n = len(regs)
    for i0 in range(0, n, ntmp):
        blk = regs[i0:i0+ntmp]
        for k, r in enumerate(blk): G.append(one(f"v_min_f32 v{tbase+k}, 0, v{r}"))
        for k, r in enumerate(blk): G.append(one(f"v_mul_f32 v{tbase+k}, s{S_L2E}, v{tbase+k}"))
        for k, r in enumerate(blk): G.append(one(f"v_exp_f32 v{tbase+k}, v{tbase+k}"))
        for k, r in enumerate(blk): G.append(one(f"v_max_f32 v{r}, 0, v{r}"))
        for k, r in enumerate(blk): G.append(one(f"v_add_f32 v{r}, s{S_EPS}, v{r}"))
        for k, r in enumerate(blk): G.append(one(f"v_add_f32 v{r}, v{r}, v{tbase+k}"))
    return G

def norm_groups(t):
    G = []
    for pr in range(2):
        r0, r1 = X + 4 * t + 2 * pr, X + 4 * t + 2 * pr + 1
        a = TMP
        G.append(one(f"v_lshlrev_b32 v{a}, 16, v{r0}"))
        G.append(one(f"v_and_b32 v{a+1}, 0xffff0000, v{r0}"))
        G.append(one(f"v_lshlrev_b32 v{a+2}, 16, v{r1}"))
        G.append(one(f"v_and_b32 v{a+3}, 0xffff0000, v{r1}"))
        for k in range(4):
            G.append(one(f"v_fma_f32 v{a+k}, v{a+k}, v{V_RS}, v{V_C}"))
        G.append(one(f"v_cvt_pk_bf16_f32 v{r0}, v{a}, v{a+1}"))
        G.append(one(f"v_cvt_pk_bf16_f32 v{r1}, v{a+2}, v{a+3}"))
    return G

def flush(st, groups):
    for g in groups: st.ops.extend(g)

def head(x): return x // 20

class Passes:
    def __init__(self, st, typ):
        self.st = st; self.typ = typ
        self.nb2 = 2 if typ == "A" else 3
        self.items = [(1, t, b) for t in range(40) for b in range(5)] + [(2, t, b) for t in range(40) for b in range(self.nb2)]
        self.pend = []; self.gq = []
        self.barriered = set()
        self.after_barrier = {}
        self.before_barrier = {}
        self.since = 99
        self.dense = False
        self.since_x = 99
        self.extra = []
        self.inject = {}
        self.injq = []
    def group(self, s):
        g = Stream()
        if s >= 20: return g
        slot = s % NSLOT
        if s < 10:
            g(f"s_add_u32 s{S_GB}, s{S_K1}, {(0 if SAMEW else s) * 64 * (3840 if self.typ == 'A' else 3456)}")
            for i in range(5):
                g(f"s_add_u32 m0, s{S_M1}, {slot*SLOT + 1024*i}")
                g(f"buffer_load_dwordx4 v{V_D1+i}, s[{S_W1}:{S_W1+3}], s{S_GB} offen lds", tag=f"G{s}")
        else:
            g(f"s_add_u32 s{S_GB}, s{S_K2}, {(s-10) * 64 * (3456 if self.typ == 'A' else 3840)}")
            for i in range(3):
                g(f"s_add_u32 m0, s{S_M2}, {slot*SLOT + 1024*i}")
                g(f"buffer_load_dwordx4 v{V_D2+i}, s[{S_W2}:{S_W2+3}], s{S_GB} offen lds", tag=f"G{s}")
        return g
    def frag(self, i): return FR + 4 * (i % NFR)
    def read(self, i):
        st = self.st
        p, t, b = self.items[i]
        s = (0 if p == 1 else 10) + t // 4
        slot = s % NSLOT
        pitch = 320 if p == 1 else 192
        off = slot * SLOT + (t & 3) * 16 * pitch + 64 * b
        base = V_T1 if p == 1 else V_T2
        if off >= 3 * SLOT: base += 1; off -= 3 * SLOT
        r = self.frag(i)
        if t % 4 == 0 and b == 0 and s not in self.barriered:
            self.barriered.add(s)
            assert s not in self.pend and not any(o.tag == f"G{s}" for o in self.gq), f"stage {s} not issued"
            st.wait(vm=f"G{s}")
            if s in self.before_barrier: self.before_barrier[s](st)
            st("s_barrier")
            if s in (1, 3, 5, 7, 9): stamp(st, {1: 1, 3: 2, 5: 3, 7: 4, 9: 5}[s], "p1")
            if s == 0:
                if GLATE: self.pend.append(2)
                self.pend.append(3)
            self.pend.append(s + DIST)
            if s in self.after_barrier: self.after_barrier[s](st)
        st(f"ds_read_b64_tr_b16 v[{r}:{r+1}], v{base} offset:{off}", tag=f"F{i}")
        st(f"ds_read_b64_tr_b16 v[{r+2}:{r+3}], v{base} offset:{off + 4*pitch}", tag=f"F{i}")
    def start(self, i0):
        for i in range(i0, i0 + LOOK): self.read(i)
    def run(self, lo, hi, fillers=None, per_slot=2, lookahead_to=None, vm_takes_slot=True):
        st = self.st
        fillers = fillers if fillers is not None else []
        lim = lookahead_to if lookahead_to is not None else len(self.items)
        for i in range(lo, hi):
            p, t, b = self.items[i]
            while self.pend:
                self.gq.extend(self.group(self.pend.pop(0)).ops)
            if i in self.inject:
                assert not any(o.tag == "ft" for o in self.extra + self.gq), "format tile not issued"
                self.injq.extend(self.inject.pop(i))
            st.wait(lg=f"F{i}")
            r = self.frag(i)
            acc = (ACC1 if p == 1 else ACC2) + 16 * b
            cin = "0" if t == 0 else f"a[{acc}:{acc+15}]"
            W = f"v[{r}:{r+3}]"; Xr = f"v[{X+4*t}:{X+4*t+3}]"
            if p == 1 and self.typ == "A":
                st(f"v_mfma_f32_32x32x16_bf16 a[{acc}:{acc+15}], {Xr}, {W}, {cin}")
            else:
                st(f"v_mfma_f32_32x32x16_bf16 a[{acc}:{acc+15}], {W}, {Xr}, {cin}")
            used = 0
            every = 4 if p == 1 else (VME_A2 if self.typ == "A" else VME_B2)
            if p == 1: every = VME_1 if (i >= 40 or not GLATE) else 2
            if self.dense: every = 1
            self.since += 1
            self.since_x += 1
            q = None
            if self.gq and self.since >= every:
                q = self.gq; self.since = 0
            elif self.extra and self.since_x >= (1 if self.dense else (FT_EVERY if p == 1 else max(every, 2))) and (self.since > 0 or not self.gq):
                q = self.extra; self.since_x = 0
            while q:
                op = q.pop(0); st.ops.append(op)
                if op.kind == "vmem":
                    used = 1 if vm_takes_slot else 0
                    break
            if i + LOOK < lim: self.read(i + LOOK)
            if self.injq:
                isst = any(o.kind == "vmem" for o in self.injq[0])
                if not isst or (i % 4 == 2 and used == 0 and self.since > 0):
                    st.ops.extend(self.injq.pop(0))
            for _ in range(per_slot - used):
                if fillers: st.ops.extend(fillers.pop(0))
        return fillers
    def drain_groups(self, keep_extra=False):
        while self.pend:
            self.gq.extend(self.group(self.pend.pop(0)).ops)
        if self.extra and not keep_extra:
            self.gq.extend(self.extra); self.extra = []
        self.st.ops.extend(self.gq); self.gq = []

V_FTGT = TMP + 28
def _flag_addr(st, spec):
    lines, stride, lanes, extra = spec
    for ln in lines: st(ln)
    if lanes == 1:
        st(f"v_mov_b32 v{V_FOFF}, s{S_T}")
    else:
        st(f"v_mul_u32_u24 v{V_FOFF}, {stride}, v{V_LANE}")
        st(f"v_add_u32 v{V_FOFF}, s{S_T}, v{V_FOFF}")
        if extra:
            for ln in extra: st(ln)
            st(f"v_mov_b32 v{V_FTGT}, s{S_T+1}")
            st(f"v_cmp_eq_u32 vcc, {lanes-1}, v{V_LANE}")
            st(f"v_cndmask_b32 v{V_FOFF}, v{V_FOFF}, v{V_FTGT}, vcc")

def preload(st, L, name, spec, srd):
    st(f"s_cmp_lg_u32 s{S_WAVE}, 0")
    st(f"s_cbranch_scc1 {L}_{name}_pre")
    _flag_addr(st, spec)
    lanes = spec[2]
    st(f"s_mov_b64 exec, {(1 << lanes) - 1}")
    st(f"buffer_load_dword v{V_FLAG}, v{V_FOFF}, s[{srd}:{srd+3}], 0 offen sc0 sc1", note="cond")
    st("s_mov_b64 exec, -1")
    st.label(f"{L}_{name}_pre")
    st.mark(name)

def poll(st, L, name, spec, targets, srd, preloaded=None):
    lanes = spec[2]
    mask = (1 << lanes) - 1
    st(f"s_cmp_lg_u32 s{S_WAVE}, 0")
    st(f"s_cbranch_scc1 {L}_{name}_ok")
    if isinstance(targets, tuple):
        st(f"v_mov_b32 v{V_FTGT}, {targets[0]}")
        st(f"v_mov_b32 v{V_FTGT+1}, {targets[1]}")
        st(f"v_cmp_eq_u32 vcc, {lanes-1}, v{V_LANE}")
        st(f"v_cndmask_b32 v{V_FTGT}, v{V_FTGT}, v{V_FTGT+1}, vcc")
    else:
        st(f"v_mov_b32 v{V_FTGT}, {targets}")
    st(f"s_mov_b64 exec, {mask}")
    if preloaded:
        st.waitmark(preloaded)
        st(f"v_cmp_ge_u32 vcc, v{V_FLAG}, v{V_FTGT}")
        st(f"s_cmp_eq_u64 vcc, {mask}")
        st(f"s_cbranch_scc1 {L}_{name}_done")
    st(f"s_mov_b32 s{S_T+2}, 0")
    import common
    if common.HWID:
        k = {"init": 0, "kv": 1, "start": 2, "ha": 3, "ob": 4, "w2c": 5, "hb": 6}[name]
        st(f"s_or_b32 s3, s3, {1 << k}")
    st.label(f"{L}_{name}_spin")
    st(f"buffer_load_dword v{V_FLAG}, v{V_FOFF}, s[{srd}:{srd+3}], 0 offen sc0 sc1", note="cond")
    st("s_waitcnt vmcnt(0)", note="cond")
    st(f"v_cmp_ge_u32 vcc, v{V_FLAG}, v{V_FTGT}")
    st(f"s_add_u32 s{S_T+2}, s{S_T+2}, 1")
    st(f"s_cmp_ge_u32 s{S_T+2}, 0x40000")
    st(f"s_cbranch_scc1 {L}_{name}_done")
    st(f"s_cmp_eq_u64 vcc, {mask}")
    st(f"s_cbranch_scc0 {L}_{name}_spin")
    st.label(f"{L}_{name}_done")
    st("s_mov_b64 exec, -1")
    st.label(f"{L}_{name}_ok")

def flag_off(line_base, sreg):
    return [f"s_lshl_b32 s{S_T}, s{sreg}, 7", f"s_add_u32 s{S_T}, s{S_T}, {FL_OFF + 128*line_base}"]
def flag_spec(line_base, sreg): return (flag_off(line_base, sreg), 0, 1, None)

INIT_SPEC = ([f"s_and_b32 s{S_T}, s2, 3", f"s_lshl_b32 s{S_T}, s{S_T}, 6"], 0, 1, None)
W2C_SPEC = ([f"s_mov_b32 s{S_T}, {FL_OFF + 128*FL_W2}"], 128, 8, None)
START_SPEC = ([f"s_mov_b32 s{S_T}, {FL_OFF + 128*FL_W2}"], 128, 9,
              [f"s_lshl_b32 s{S_T+1}, s{S_R}, 7", f"s_add_u32 s{S_T+1}, s{S_T+1}, {FL_OFF + 128*FL_HB}"])

def signal(st, L, name, off_lines, srd, lanes=1, lane_stride=0):
    st(f"s_cmp_lg_u32 s{S_WAVE}, 0")
    st(f"s_cbranch_scc1 {L}_{name}_sig")
    st(f"v_mov_b32 v{TMP+4}, 1")
    for ln in off_lines: st(ln)
    if lane_stride:
        st(f"v_mul_u32_u24 v{TMP+5}, {lane_stride}, v{V_LANE}")
        st(f"v_add_u32 v{TMP+5}, s{S_T}, v{TMP+5}")
    else:
        st(f"v_mov_b32 v{TMP+5}, s{S_T}")
    st(f"s_mov_b64 exec, {(1 << lanes) - 1}")
    st(f"buffer_atomic_add v{TMP+4}, v{TMP+5}, s[{srd}:{srd+3}], 0 offen", note="cond")
    st("s_mov_b64 exec, -1")
    st.label(f"{L}_{name}_sig")

def kv_epilogue_A(st, L):
    PK = [TMP, TMP + 8, TMP + 16]; VB = [TMP + 24, TMP + 32, TMP + 40]
    VAL = FR; T = FR + 16
    for vb, b in ((0, 2), (1, 3), (2, 4)):
        a = ACC1 + 16 * b
        for i in range(16): st(f"v_accvgpr_read_b32 v{VAL+i}, a{a+i}")
        for p in range(8):
            st(f"v_cvt_pk_bf16_f32 v{VB[vb]+p}, v{VAL+2*p}, v{VAL+2*p+1}")
    st(f"v_mov_b32 v{T}, 0x3f803f80")
    for p in range(8):
        st(f"v_cndmask_b32 v{VB[0]+p}, v{VB[0]+p}, v{T}, s[{S_HALF+2}:{S_HALF+3}]")
    for kb in range(3):
        a = ACC1 + 16 * kb
        for i in range(16): st(f"v_accvgpr_read_b32 v{VAL+i}, a{a+i}")
        flush(st, phi_groups([VAL + i for i in range(16)], T, 8))
        for p in range(8):
            st(f"v_cvt_pk_bf16_f32 v{PK[kb]+p}, v{VAL+2*p}, v{VAL+2*p+1}")
    stamp(st, 4)
    tiles = [(0, 0), (0, 1), (1, 1), (1, 2), (2, 2), (1, 0), (2, 0)]
    DT = [16 * i for i in range(7)]
    for tau in range(2):
        for n, (kd, ve) in enumerate(tiles):
            d = DT[n]
            cin = "0" if tau == 0 else f"a[{d}:{d+15}]"
            st(f"v_mfma_f32_32x32x16_bf16 a[{d}:{d+15}], v[{PK[kd]+4*tau}:{PK[kd]+4*tau+3}], v[{VB[ve]+4*tau}:{VB[ve]+4*tau+3}], {cin}")
    eoff = {0: -16, 1: 16, 2: 48}
    def setexec(mask):
        st(f"s_mov_b32 exec_lo, 0x{mask & 0xffffffff:x}")
        st(f"s_mov_b32 exec_hi, 0x{mask >> 32:x}")
    for n, (kd, ve) in enumerate(tiles):
        for q in range(4):
            r = DT[n] + 4 * q
            if n < 5:
                mask = 0
                for l in range(64):
                    c, h = l & 31, l >> 5
                    d = 32 * kd + 8 * q + 4 * h
                    if d >= 80 or (ve == 0 and c < 16): continue
                    e = eoff[ve] + c
                    if e < 80 and head(e) == head(d): mask |= 1 << l
                if mask:
                    setexec(mask)
                    st(f"ds_write_b128 v{V_KVA}, a[{r}:{r+3}] offset:{80*(eoff[ve]+16) + 128*kd + 32*q}", tag="kvw")
            if ve == 0:
                byhead = {}
                for h in range(2):
                    d = 32 * kd + 8 * q + 4 * h
                    if d < 80: byhead[head(d)] = byhead.get(head(d), 0) | (1 << (32 * h))
                for hd, mask in byhead.items():
                    setexec(mask)
                    st(f"ds_write_b128 v{V_Z}, a[{r}:{r+3}] offset:{1600*hd + 1600 + 128*kd + 32*q}", tag="kvw")
    st("s_mov_b64 exec, -1")
    st.wait(lg="kvw")
    if FUSED and EARLY: preload(st, L, "w2cp", W2C_SPEC, S_WS)
    st("s_barrier")
    A0 = TMP + 4
    st(f"v_lshlrev_b32 v{A0}, 2, v0")
    st(f"v_add_u32 v{A0+1}, {KVP}, v{A0}")
    RB = FR
    for i in range(7):
        for wv in range(4):
            st(f"ds_read_b32 v{RB+4*i+wv}, v{A0+1} offset:{7168*wv + 1024*i}", tag=f"kr{i}")
    st(f"s_add_u32 s{S_T+2}, s{S_KV}, 4096")
    for i in range(7):
        st.wait(lg=f"kr{i}")
        r = RB + 4 * i
        st(f"v_add_f32 v{r}, v{r}, v{r+1}")
        st(f"v_add_f32 v{r+2}, v{r+2}, v{r+3}")
        st(f"v_add_f32 v{r}, v{r}, v{r+2}")
        sreg = S_KV if i < 4 else S_T + 2
        st(f"buffer_atomic_add_f32 v{r}, v{A0}, s[{S_WS}:{S_WS+3}], s{sreg} offen offset:{1024*(i&3)}", tag="kvat")

def q_epilogue_B(st, L):
    PQ = TMP; VAL = FR; T = FR + 16
    for b in range(3):
        a = ACC2 + 16 * b
        n = 16 if b < 2 else 8
        for i in range(n): st(f"v_accvgpr_read_b32 v{VAL+i}, a{a+i}")
        flush(st, phi_groups([VAL + i for i in range(n)], T, 8))
        for p in range(n // 2):
            st(f"v_cvt_pk_bf16_f32 v{PQ+8*b+p}, v{VAL+2*p}, v{VAL+2*p+1}")
    for i in range(4): st(f"v_mov_b32 v{VAL+i}, 0")
    st(f"v_lshlrev_b32 v{T}, 4, v0")
    st(f"v_add_u32 v{T}, {KVP}, v{T}")
    for i in range(8):
        st(f"ds_write_b128 v{T}, v[{VAL}:{VAL+3}] offset:{4096*i}", tag="z")

def o_block_B(st, L, regs, preloaded):
    PQ = TMP
    T, RT, NRT, AF, NAF, DT, RD = regs
    poll(st, L, "kv", flag_spec(FL_KVC, S_G), 16, S_WS, preloaded=preloaded)
    st.wait(lg="z")
    st("s_barrier")
    stamp(st, 5)
    st(f"v_lshlrev_b32 v{T}, 4, v0")
    st(f"s_add_u32 s{S_T+2}, s{S_KV}, 4096")
    st(f"buffer_load_dwordx4 v[{T+4}:{T+7}], v{T}, s[{S_WS}:{S_WS+3}], s{S_KV} offen sc0 sc1", tag="kvl0")
    st(f"buffer_load_dwordx4 v[{T+8}:{T+11}], v{T}, s[{S_WS}:{S_WS+3}], s{S_T+2} offen sc0 sc1", tag="kvl1")
    st.wait(vm="kvl0")
    st(f"ds_write_b128 v{V_W}, v[{T+4}:{T+7}]", tag="kvw")
    st(f"ds_write_b128 v{V_W+1}, v[{T+4}:{T+7}]", tag="kvw")
    st.wait(vm="kvl1")
    st(f"ds_write_b128 v{V_W+2}, v[{T+8}:{T+11}]", tag="kvw")
    st(f"ds_write_b128 v{V_W+3}, v[{T+8}:{T+11}]", tag="kvw")
    st.wait(lg="kvw")
    st("s_barrier")
    frs = [(0, 0), (0, 1), (0, 2), (1, 1), (1, 2), (1, 3), (1, 4), (2, 0), (2, 1), (2, 2), (2, 3), (2, 4)]
    def rd(n):
        E, tp = frs[n]
        r = RT + 8 * (n % NRT)
        off = 32 * E * KVP_PITCH + 64 * tp
        st(f"ds_read_b128 v[{r}:{r+3}], v{V_KVA} offset:{off}", tag=f"kf{n}")
        st(f"ds_read_b128 v[{r+4}:{r+7}], v{V_KVA} offset:{off+32}", tag=f"kf{n}")
    for n in range(NRT): rd(n)
    first = {0: True, 1: True, 2: True}
    for n, (E, tp) in enumerate(frs):
        r = RT + 8 * (n % NRT); f = AF + 4 * (n % NAF)
        st.wait(lg=f"kf{n}")
        for k in range(4):
            st(f"v_cvt_pk_bf16_f32 v{f+k}, v{r+2*k}, v{r+2*k+1}")
        if n + NRT < 12: rd(n + NRT)
        q = PQ + 8 * (tp >> 1) + 4 * (tp & 1)
        d = DT + 16 * E
        cin = "0" if first[E] else f"v[{d}:{d+15}]"
        first[E] = False
        st(f"v_mfma_f32_32x32x16_bf16 v[{d}:{d+15}], v[{f}:{f+3}], v[{q}:{q+3}], {cin}")
    d2 = DT + 32
    for h in range(4):
        st(f"v_add_f32 v{RD+h}, s{S_EPS}, v{d2+8+h}")
    for h in range(4):
        st(f"v_rcp_f32 v{RD+h}, v{RD+h}")
    st(f"v_cndmask_b32 v{RD+4}, v{RD+0}, v{RD+1}, s[{S_HALF}:{S_HALF+1}]")
    st(f"v_cndmask_b32 v{RD+5}, v{RD+2}, v{RD+3}, s[{S_HALF}:{S_HALF+1}]")
    sel = {0: RD, 1: RD, 2: RD + 4, 3: RD + 1, 4: RD + 1, 5: RD + 2, 6: RD + 2, 7: RD + 5, 8: RD + 3, 9: RD + 3}
    for hb in range(5):
        a = DT + 16 * (hb >> 1) + 8 * (hb & 1)
        for i in range(8):
            Q = 2 * hb + (i >> 2)
            st(f"v_mul_f32 v{a+i}, v{a+i}, v{sel[Q]}")
        for p in range(4):
            st(f"v_cvt_pk_bf16_f32 v{a+p}, v{a+2*p}, v{a+2*p+1}")
        st(f"buffer_store_dwordx4 v[{a}:{a+3}], v{V_OH}, s[{S_WS}:{S_WS+3}], s{S_O+hb} offen{ST_FLAGS}", tag="ost")

V_OH = TMP + 38

def o_epilogue_B(st, L):
    q_epilogue_B(st, L)
    stamp(st, 4)
    st(f"v_mov_b32 v{V_OH}, v{V_H}")
    o_block_B(st, L, (X + 128, X + 48, 4, X, 4, X + 80, X + 140), "kvp")

def fmt_setup(st, L):
    st("s_sub_u32 s40, s2, 128")
    st("s_lshl_b32 s40, s40, 2")
    st(f"s_add_u32 s40, s40, s{S_WAVE}")
    st("s_mul_i32 s98, s40, 52429")
    st("s_lshr_b32 s98, s98, 18")
    st("s_mul_i32 s41, s98, 5")
    st("s_sub_u32 s99, s40, s41")
    st("s_lshl_b32 s45, s98, 5")
    st("s_add_u32 s46, s45, 16")
    st(f"s_mov_b32 s{S_FMT}, s{P_W2}")
    st(f"s_mov_b32 s{S_FMT+1}, s{P_W2+1}")
    st(f"s_mov_b32 s{S_FMT+2}, {W2_BYTES}")
    st(f"s_mov_b32 s{S_FMT+3}, 0x20000")
    st("s_cmp_lt_u32 s98, 54")
    st(f"s_cbranch_scc1 {L}_rows")
    st(f"s_mov_b32 s{S_FMT}, s{P_WO}")
    st(f"s_mov_b32 s{S_FMT+1}, s{P_WO+1}")
    st(f"s_mov_b32 s{S_FMT+2}, {WO_BYTES}")
    st("s_sub_u32 s42, s98, 54")
    st("s_mul_i32 s43, s42, 52429")
    st("s_lshr_b32 s43, s43, 18")
    st("s_mul_i32 s41, s43, 5")
    st("s_sub_u32 s42, s42, s41")
    st("s_mul_i32 s43, s43, 160")
    T0 = [0, 32, 64, 80, 112]; T1 = [16, 48, 144, 96, 128]
    st(f"s_mov_b32 s45, {T0[0]}")
    st(f"s_mov_b32 s46, {T1[0]}")
    for f in range(1, 5):
        st(f"s_cmp_eq_u32 s42, {f}")
        st(f"s_cselect_b32 s45, {T0[f]}, s45")
        st(f"s_cselect_b32 s46, {T1[f]}, s46")
    st("s_add_u32 s45, s45, s43")
    st("s_add_u32 s46, s46, s43")
    st.label(f"{L}_rows")
    st("s_lshl_b32 s41, s99, 8")
    for u in range(2):
        st(f"s_mul_i32 s42, s{45+u}, 1280")
        st(f"s_add_u32 s{96+u}, s42, s41")
    st("s_cmp_ge_u32 s40, 370")
    st(f"s_cselect_b32 s{S_FMT+2}, 0, s{S_FMT+2}")
    st("s_cselect_b32 s100, 0x40000000, 0")

def fmt_dma_ops():
    g = Stream()
    v = V_FMT
    for i in range(8):
        g(f"s_add_u32 s101, s{96 + (i >> 2)}, {5120 * (i & 3)}")
        g(f"s_add_u32 m0, s{S_FTM}, {1024*i}")
        g(f"buffer_load_dwordx4 v{v}, s[{S_FMT}:{S_FMT+3}], s101 offen lds", tag="ft")
    return g.ops

def fmt_addr(st):
    v = V_FMT; l = V_LANE; a = TMP + 34
    st(f"v_lshrrev_b32 v{v}, 4, v{l}")
    st(f"v_mul_u32_u24 v{v}, 1280, v{v}")
    st(f"v_and_b32 v{a}, 15, v{l}")
    st(f"v_lshl_add_u32 v{v}, v{a}, 4, v{v}")
    st(f"s_lshl_b32 s{S_FTM}, s{S_WAVE}, 13")
    st(f"s_add_u32 s{S_FTM}, s{S_FTM}, {FT}")
    st(f"v_lshrrev_b32 v{a}, 4, v{l}")
    st(f"v_lshrrev_b32 v{v+1}, 1, v{a}")
    st(f"v_and_b32 v{a}, 1, v{a}")
    st(f"v_lshlrev_b32 v{v+1}, 4, v{v+1}")
    st(f"v_lshl_add_u32 v{v+1}, v{a}, 2, v{v+1}")
    st(f"v_bfe_u32 v{a}, v{l}, 2, 2")
    st(f"v_add_u32 v{v+1}, v{v+1}, v{a}")
    st(f"v_lshlrev_b32 v{v+1}, 8, v{v+1}")
    st(f"v_and_b32 v{a}, 3, v{l}")
    st(f"v_lshl_add_u32 v{v+1}, v{a}, 3, v{v+1}")
    st(f"v_add_u32 v{v+1}, s{S_FTM}, v{v+1}")
    st(f"v_lshlrev_b32 v{v+2}, 4, v{l}")

def fmt_finish_groups():
    v = V_FMT; D0 = TMP + 8
    halves = []
    for hf in range(2):
        G = []; ST = []
        for jj in range(4):
            j = 4 * hf + jj
            s = Stream()
            if j == 0: s.wait(vm="ft")
            s(f"ds_read_b64_tr_b16 v[{D0+4*jj}:{D0+4*jj+1}], v{v+1} offset:{32*j}", tag=f"fr{j}")
            s(f"ds_read_b64_tr_b16 v[{D0+4*jj+2}:{D0+4*jj+3}], v{v+1} offset:{32*j+2048}", tag=f"fr{j}")
            G.append(s.ops)
            s = Stream()
            s("s_lshl_b32 s43, s99, 3")
            s(f"s_add_u32 s43, s43, {j}")
            s("s_mul_i32 s47, s43, 52429")
            s("s_lshr_b32 s47, s47, 18")
            s("s_mul_i32 s101, s47, 5")
            s("s_sub_u32 s43, s43, s101")
            s(f"s_mul_i32 s47, s47, {NKB}")
            s("s_add_u32 s47, s47, s98")
            s("s_mul_i32 s47, s47, 5")
            s("s_add_u32 s47, s47, s43")
            s("s_lshl_b32 s47, s47, 10")
            s("s_add_u32 s47, s47, s100")
            s(f"s_add_u32 s47, s47, {W2F_OFF}")
            s.wait(lg=f"fr{j}")
            s(f"buffer_store_dwordx4 v[{D0+4*jj}:{D0+4*jj+3}], v{v+2}, s[{S_WS}:{S_WS+3}], s47 offen{ST_FLAGS}", tag="fst")
            ST.append(s.ops)
        halves.append((G, ST))
    return halves

XREG0 = SLOT
def x_region(j):
    return XREG0 + 16384 * (j if j < 8 else j - 5)

def x_phase(st, L, hook):
    l = V_LANE
    vXa, vXb, vXR, SUM, SQ = TMP + 4, TMP + 5, TMP + 6, TMP + 14, TMP + 18
    def chunk_ops(j):
        g = Stream()
        for i in range(4):
            g(f"s_add_u32 s{S_T+1}, s{S_XB}, {8*i*1280 + 128*j}")
            g(f"s_add_u32 m0, s{S_XM}, {x_region(j) + 1024*i}")
            g(f"buffer_load_dwordx4 v{vXa + (i & 1)}, s[{S_X}:{S_X+3}], s{S_T+1} offen lds", tag=f"X{j}")
        return g.ops
    def chunk(j): st.ops.extend(chunk_ops(j))
    if TOUCH:
        st(f"s_and_b32 s40, s{S_G}, 3")
        st("s_lshr_b32 s41, s2, 7")
        st("s_lshl_b32 s41, s41, 2")
        st("s_add_u32 s40, s40, s41")
        st("s_mul_i32 s40, s40, 20480")
        st(f"s_mul_i32 s41, s{S_R}, 163840")
        st("s_add_u32 s40, s40, s41")
        st(f"v_lshlrev_b32 v{TMP+22}, 4, v0")
        for i in range(5):
            st(f"buffer_load_dwordx4 v[{TMP+24}:{TMP+27}], v{TMP+22}, s[{S_X}:{S_X+3}], s40 offen", tag="touch")
            if i < 4: st("s_add_u32 s40, s40, 4096")
    st(f"v_lshrrev_b32 v{TMP}, 3, v{l}")
    st(f"v_lshrrev_b32 v{TMP+1}, 4, v{l}")
    st(f"v_and_b32 v{TMP+2}, 7, v{l}")
    st(f"v_xor_b32 v{TMP+2}, v{TMP+2}, v{TMP+1}")
    st(f"v_mul_u32_u24 v{TMP}, 1280, v{TMP}")
    st(f"v_lshl_add_u32 v{vXa}, v{TMP+2}, 4, v{TMP}")
    st(f"v_xor_b32 v{TMP+2}, 4, v{TMP+2}")
    st(f"v_lshl_add_u32 v{vXb}, v{TMP+2}, 4, v{TMP}")
    for j in range(2): chunk(j)
    stamp(st, 1, "x")
    hook("setup")
    st(f"v_and_b32 v{TMP}, 31, v{l}")
    st(f"v_bfe_u32 v{TMP+1}, v{l}, 1, 3")
    st(f"v_lshrrev_b32 v{TMP+2}, 5, v{l}")
    st(f"v_lshlrev_b32 v{TMP}, 7, v{TMP}")
    st(f"v_add_u32 v{TMP}, s{S_XM}, v{TMP}")
    for tt in range(4):
        st(f"v_add_u32 v{TMP+3}, {2*tt}, v{TMP+2}")
        st(f"v_xor_b32 v{TMP+3}, v{TMP+3}, v{TMP+1}")
        st(f"v_lshl_add_u32 v{vXR+tt}, v{TMP+3}, 4, v{TMP}")
        st(f"v_add_u32 v{vXR+4+tt}, {XREG0}, v{vXR+tt}")
    for tt in range(4):
        st(f"v_add_u32 v{vXR+tt}, {XREG0 + 65536}, v{vXR+tt}")
    SUM, SQ = TMP + 14, TMP + 18
    for k in range(4):
        st(f"v_mov_b32 v{SUM+k}, 0")
        st(f"v_mov_b32 v{SQ+k}, 0")
    stamp(st, 2, "x")
    for j in range(2, 5): chunk(j)
    stamp(st, 3, "x")
    def stats(j, q):
        for i in range(16):
            if i % 2 == 0:
                while q:
                    op = q.pop(0); st.ops.append(op)
                    if op.kind == "vmem": break
            r = X + 16 * j + i
            if NOSTATS: continue
            st(f"v_dot2c_f32_bf16 v{SUM+(i&3)}, 0x3f803f80, v{r}")
            st(f"v_dot2c_f32_bf16 v{SQ+(i&3)}, v{r}, v{r}")
    def reads(j):
        off = x_region(j) - XREG0
        base = vXR + 4
        if off >= 65536: base = vXR; off -= 65536
        for tt in range(4):
            r = X + 16 * j + 4 * tt
            st(f"ds_read_b128 v[{r}:{r+3}], v{base+tt} offset:{off}", tag=f"xr{j}")
    q = []
    for j in range(10):
        st.wait(vm=f"X{j}")
        if j == 0: stamp(st, 4, "x")
        if j == 9: stamp(st, 5, "x")
        reads(j)
        if j > 0:
            st.wait(lg=f"xr{j-1}")
            if j + 4 <= 9: q += chunk_ops(j + 4)
            if GLATE and PFJ <= j < PFJ + 3: q += hook(("pf", j - PFJ))
            if j == 6:
                st("s_barrier")
                q += hook("g0")
            if j == 7 and not GLATE: q += hook("g12")
            stats(j - 1, q)
    st.ops.extend(q); q = []
    st.wait(lg="xr9")
    stats(9, hook("g1") if GLATE else [])
    st(f"v_add_f32 v{SUM}, v{SUM}, v{SUM+1}")
    st(f"v_add_f32 v{SUM+2}, v{SUM+2}, v{SUM+3}")
    st(f"v_add_f32 v{SQ}, v{SQ}, v{SQ+1}")
    st(f"v_add_f32 v{SQ+2}, v{SQ+2}, v{SQ+3}")
    st(f"v_add_f32 v{SUM}, v{SUM}, v{SUM+2}")
    st(f"v_add_f32 v{SQ}, v{SQ}, v{SQ+2}")
    st(f"v_mov_b32 v{SUM+1}, v{SUM}")
    st(f"v_mov_b32 v{SQ+1}, v{SQ}")
    st(f"v_permlane32_swap_b32 v{SUM}, v{SUM+1}")
    st(f"v_permlane32_swap_b32 v{SQ}, v{SQ+1}")
    st(f"v_add_f32 v{SUM}, v{SUM}, v{SUM+1}")
    st(f"v_add_f32 v{SQ}, v{SQ}, v{SQ+1}")
    st(f"v_mul_f32 v{SUM}, 0x3acccccd, v{SUM}")
    st(f"v_mul_f32 v{SQ}, 0x3acccccd, v{SQ}")
    st(f"v_fma_f32 v{SQ}, -v{SUM}, v{SUM}, v{SQ}")
    st(f"v_max_f32 v{SQ}, 0, v{SQ}")
    st(f"v_cvt_pk_bf16_f32 v{SUM}, v{SUM}, v{SQ}")
    st(f"v_and_b32 v{SQ}, 0xffff0000, v{SUM}")
    st(f"v_lshlrev_b32 v{SUM}, 16, v{SUM}")
    st(f"v_add_f32 v{SQ}, 0x3727c5ac, v{SQ}")
    st(f"v_cvt_pk_bf16_f32 v{SQ}, v{SQ}, v{SQ}")
    st(f"v_lshlrev_b32 v{SQ}, 16, v{SQ}")
    st(f"v_sqrt_f32 v{SQ}, v{SQ}")
    st(f"v_cvt_pk_bf16_f32 v{SQ}, v{SQ}, v{SQ}")
    st(f"v_lshlrev_b32 v{SQ}, 16, v{SQ}")
    st(f"v_rcp_f32 v{V_RS}, v{SQ}")
    st(f"v_mul_f32 v{V_C}, v{SUM}, v{V_RS}")
    st(f"v_sub_f32 v{V_C}, 0, v{V_C}")

def setup_common(st, L):
    st("s_cmp_ge_u32 s2, 256")
    st(f"s_cbranch_scc1 {L}_exit")
    stamp(st, 0)
    st("s_mov_b32 s3, 0")
    st(f"s_load_dwordx16 s[{KA}:{KA+15}], s[0:1], 0")
    st(f"s_load_dwordx2 s[{P_WS}:{P_WS+1}], s[0:1], {KA_WS}")
    st("v_lshrrev_b32 v1, 6, v0")
    st(f"v_and_b32 v{V_LANE}, 63, v0")
    st(f"v_readfirstlane_b32 s{S_WAVE}, v1")
    st("s_and_b32 s40, s2, 7")
    st("s_lshr_b32 s41, s2, 3")
    st("s_lshr_b32 s42, s40, 1")
    st("s_lshl_b32 s42, s42, 2")
    st("s_and_b32 s43, s41, 3")
    st(f"s_add_u32 s{S_R}, s42, s43")
    st("s_and_b32 s42, s40, 1")
    st("s_lshl_b32 s42, s42, 2")
    st("s_bfe_u32 s43, s41, 0x20002")
    st(f"s_add_u32 s{S_G}, s42, s43")
    st(f"s_lshl_b32 s42, s{S_R}, 2")
    st(f"s_add_u32 s42, s42, s{S_WAVE}")
    st(f"s_mul_i32 s{S_XB}, s42, {32*1280}")
    st(f"s_mul_i32 s{S_H}, s42, {2*NKB*1024}")
    st(f"s_add_u32 s{S_H}, s{S_H}, {HF_OFF}")
    st(f"s_lshl_b32 s{S_XM}, s{S_WAVE}, 12")
    st(f"s_mul_i32 s{S_M1}, s{S_WAVE}, 5120")
    st(f"s_mul_i32 s{S_M2}, s{S_WAVE}, 3072")
    st(f"s_lshl_b32 s{S_KV}, s{S_G}, 13")
    st(f"s_add_u32 s{S_KV}, s{S_KV}, {KV_OFF}")
    st.waitall(vm=False)
    srd(st, S_X, P_X, X_BYTES)
    srd(st, S_WS, P_WS, WS_USED)

def setup_late(st, L):
    l = V_LANE
    srd(st, S_DBG, P_DBG, 256)
    st(f"s_mov_b32 s{S_EPS}, 0x{EPS6:x}")
    st(f"s_mov_b32 s{S_L2E}, 0x{LOG2E:x}")
    st(f"s_mov_b32 s{S_HALF}, 0")
    st(f"s_mov_b32 s{S_HALF+1}, -1")
    st(f"s_mov_b32 s{S_HALF+2}, 0x0000ffff")
    st(f"s_mov_b32 s{S_HALF+3}, 0x0000ffff")
    a, b, c = FR, FR + 1, FR + 2
    st(f"v_lshrrev_b32 v{a}, 5, v{l}")
    st(f"v_lshlrev_b32 v{a}, 3, v{a}")
    st(f"v_bfe_u32 v{b}, v{l}, 2, 2")
    st(f"v_add_u32 v{a}, v{a}, v{b}")
    st(f"v_bfe_u32 v{b}, v{l}, 4, 1")
    st(f"v_lshlrev_b32 v{b}, 5, v{b}")
    st(f"v_and_b32 v{c}, 3, v{l}")
    st(f"v_lshl_add_u32 v{b}, v{c}, 3, v{b}")
    st(f"v_mul_u32_u24 v{c}, 320, v{a}")
    st(f"v_add_u32 v{V_T1}, v{c}, v{b}")
    st(f"v_add_u32 v{V_T1+1}, {3*SLOT}, v{V_T1}")
    st(f"v_mul_u32_u24 v{c}, 192, v{a}")
    st(f"v_add_u32 v{V_T2}, v{c}, v{b}")
    st(f"v_add_u32 v{V_T2+1}, {3*SLOT}, v{V_T2}")
    st(f"v_bfe_u32 v{a}, v{l}, 4, 1")
    st(f"v_mul_u32_u24 v{a}, {NKB*1024}, v{a}")
    st(f"v_and_b32 v{b}, 15, v{l}")
    st(f"v_lshl_add_u32 v{a}, v{b}, 4, v{a}")
    st(f"v_lshrrev_b32 v{b}, 5, v{l}")
    st(f"v_lshl_add_u32 v{V_H}, v{b}, 8, v{a}")

def dma_tables(st, typ):
    l = V_LANE
    a, b, c, d = FR, FR + 1, FR + 2, FR + 3
    if typ == "A":
        st(f"s_mul_i32 s40, s{S_G}, 160")
        st("s_add_u32 s40, s40, 1280")
        st(f"s_lshl_b32 s41, s{S_G}, 7")
    else:
        st(f"s_mul_i32 s44, s{S_G}, 5")
        st("s_add_u32 s44, s44, 16")
        st(f"s_cmp_eq_u32 s{S_G}, 6")
        st("s_cselect_b32 s44, 45, s44")
        st(f"s_cmp_eq_u32 s{S_G}, 7")
        st("s_cselect_b32 s44, 49, s44")
        st("s_lshl_b32 s40, s44, 6")
        st(f"s_mul_i32 s41, s{S_G}, 160")
    for i in range(5):
        st(f"v_add_u32 v{a}, {64*i}, v{l}")
        st(f"v_mul_u32_u24 v{b}, 3277, v{a}")
        st(f"v_lshrrev_b32 v{b}, 16, v{b}")
        st(f"v_mul_u32_u24 v{c}, 20, v{b}")
        st(f"v_sub_u32 v{c}, v{a}, v{c}")
        st(f"v_mul_u32_u24 v{b}, {3840 if typ == 'A' else 3456}, v{b}")
        st(f"v_lshl_add_u32 v{b}, v{c}, 4, v{b}")
        if typ == "A":
            st(f"v_cmp_le_u32 vcc, 10, v{c}")
            st(f"v_add_u32 v{d}, 1120, v{b}")
            st(f"v_cndmask_b32 v{b}, v{b}, v{d}, vcc")
        st(f"v_add_u32 v{V_D1+i}, s40, v{b}")
    for i in range(3):
        st(f"v_add_u32 v{a}, {64*i}, v{l}")
        st(f"v_mul_u32_u24 v{b}, 5462, v{a}")
        st(f"v_lshrrev_b32 v{b}, 16, v{b}")
        st(f"v_mul_u32_u24 v{c}, 12, v{b}")
        st(f"v_sub_u32 v{c}, v{a}, v{c}")
        if typ == "A":
            st(f"v_and_b32 v{c}, 7, v{c}")
        else:
            st(f"v_subrev_u32 v{d}, 10, v{c}")
            st(f"v_cmp_gt_u32 vcc, 10, v{c}")
            st(f"v_cndmask_b32 v{c}, v{d}, v{c}, vcc")
        st(f"v_mul_u32_u24 v{b}, {3456 if typ == 'A' else 3840}, v{b}")
        st(f"v_lshl_add_u32 v{b}, v{c}, 4, v{b}")
        st(f"v_add_u32 v{V_D2+i}, s41, v{b}")

def prefetch_weights(st, typ):
    v = TMP + 22
    sq, s1 = (S_W1, S_W2) if typ == "A" else (S_W2, S_W1)
    st(f"v_lshlrev_b32 v{v}, 4, v0")
    if WPREF:
        st("s_mul_i32 s42, s2, 9600")
        st("s_mul_i32 s43, s2, 8640")
        for i in range(3):
            st(f"buffer_load_dwordx4 v[{TMP+24}:{TMP+27}], v{v}, s[{sq}:{sq+3}], s42 offen", tag="pf")
            st("s_add_u32 s42, s42, 3200")
            st(f"buffer_load_dwordx4 v[{TMP+28}:{TMP+31}], v{v}, s[{s1}:{s1+3}], s43 offen", tag="pf")
            st("s_add_u32 s43, s43, 2880")

def prefetch_w2_ops():
    g = Stream()
    v = TMP + 22
    g(f"s_mov_b32 s{S_PF}, s{P_W2}")
    g(f"s_mov_b32 s{S_PF+1}, s{P_W2+1}")
    g(f"s_mov_b32 s{S_PF+2}, {W2_BYTES}")
    g(f"s_mov_b32 s{S_PF+3}, 0x20000")
    g(f"v_lshlrev_b32 v{v}, 4, v0")
    g("s_mul_i32 s43, s2, 8640")
    for i in range(3):
        g(f"buffer_load_dwordx4 v[{TMP+24}:{TMP+27}], v{v}, s[{S_PF}:{S_PF+3}], s43 offen", tag="pf")
        g("s_add_u32 s43, s43, 2880")
    g(f"s_mov_b32 s{S_PF}, s{P_WO}")
    g(f"s_mov_b32 s{S_PF+1}, s{P_WO+1}")
    g(f"s_mov_b32 s{S_PF+2}, {WO_BYTES}")
    g("s_mul_i32 s43, s2, 3200")
    g(f"buffer_load_dwordx4 v[{TMP+24}:{TMP+27}], v{v}, s[{S_PF}:{S_PF+3}], s43 offen", tag="pf")
    return g.ops

DUMP_XN = False
HB_SLOT = 252
HB_STAGE, HB_FILL_END, HB_PER = 18, 280, 3
PFJ = 1
NOSTATS = False
GLATE = False
FT_EVERY = 3
FT_T0 = 110
FMTX = ""
EARLY = True
S2D = 3
S2FLAGS = " sc1"
S2ROT = True
OSTEP = 2
W2PF = False
FMT_STAGE = 1
VME_1, VME_A2, VME_B2 = 3, 2, 3
SAMEW = False
FUSED = False
TOUCH = True
NOFMT = False
NONORM = False
WPREF = True
def dump_xn(st):
    st(f"v_lshlrev_b32 v{TMP}, 4, v{V_LANE}")
    st(f"s_lshl_b32 s40, s{S_R}, 2")
    st(f"s_add_u32 s40, s40, s{S_WAVE}")
    st("s_mul_i32 s40, s40, 40960")
    for t in range(40):
        st(f"buffer_store_dwordx4 v[{X+4*t}:{X+4*t+3}], v{TMP}, s[{S_WS}:{S_WS+3}], s40 offen")
        st("s_add_u32 s40, s40, 1024")

def s1_type(st, L, typ):
    l = V_LANE
    P = Passes(st, typ)
    def type_consts():
        if typ == "A":
            st(f"s_mul_i32 s40, s{S_WAVE}, 7168")
            st(f"s_add_u32 s40, s40, {KVP}")
            a, b = FR + 8, FR + 9
            st(f"v_and_b32 v{a}, 31, v{l}")
            st(f"v_lshrrev_b32 v{b}, 5, v{l}")
            st(f"v_lshlrev_b32 v{b}, 4, v{b}")
            st(f"v_add_u32 v{V_Z}, s40, v{b}")
            st(f"v_mul_u32_u24 v{a}, 80, v{a}")
            st(f"v_add_u32 v{a}, v{a}, v{V_Z}")
            st(f"v_subrev_u32 v{V_KVA}, 1280, v{a}")
            st(f"s_lshl_b32 s{S_T+8}, s{S_G}, 11")
            st(f"s_add_u32 s{S_T+8}, s{S_T+8}, s{S_H}")
        else:
            st("s_lshl_b32 s44, s44, 10")
            st(f"s_add_u32 s{S_T+8}, s44, s{S_H}")
            st(f"s_add_u32 s{S_T+9}, s{S_T+8}, 4096")
            st(f"s_lshr_b32 s40, s{S_G}, 1")
            st("s_mul_i32 s40, s40, 5120")
            st(f"s_add_u32 s40, s40, {54*1024}")
            st(f"s_add_u32 s40, s40, s{S_H}")
            st(f"s_bitcmp1_b32 s{S_G}, 0")
            ev = [0, 512, 1024, 1536, 2048]; od = [3072, 3584, 4096, 4608, 2560]
            for hb in range(5):
                st(f"s_mov_b32 s{S_O+hb}, {ev[hb]}")
                st(f"s_cmov_b32 s{S_O+hb}, {od[hb]}")
            for hb in range(5):
                st(f"s_add_u32 s{S_O+hb}, s{S_O+hb}, s40")
            a = FR + 8
            st(f"v_and_b32 v{a}, 31, v{l}")
            st(f"v_mul_u32_u24 v{a}, {KVP_PITCH}, v{a}")
            st(f"v_lshrrev_b32 v{a+1}, 5, v{l}")
            st(f"v_lshl_add_u32 v{a}, v{a+1}, 4, v{a}")
            st(f"v_add_u32 v{V_KVA}, {KVP}, v{a}")
            DUMMY = KVP + 96 * KVP_PITCH
            r = [a + k for k in range(8)]
            for i in range(2):
                st(f"v_add_u32 v{r[0]}, {256*i}, v0")
                st(f"v_mul_u32_u24 v{r[1]}, 625, v{r[0]}")
                st(f"v_lshrrev_b32 v{r[1]}, 16, v{r[1]}")
                st(f"v_mul_u32_u24 v{r[2]}, 105, v{r[1]}")
                st(f"v_sub_u32 v{r[2]}, v{r[0]}, v{r[2]}")
                st(f"v_mul_u32_u24 v{r[3]}, 13108, v{r[2]}")
                st(f"v_lshrrev_b32 v{r[3]}, 16, v{r[3]}")
                st(f"v_mul_u32_u24 v{r[4]}, 5, v{r[3]}")
                st(f"v_sub_u32 v{r[4]}, v{r[2]}, v{r[4]}")
                st(f"v_mul_u32_u24 v{r[5]}, 5, v{r[1]}")
                st(f"v_add_u32 v{r[4]}, v{r[4]}, v{r[5]}")
                st(f"v_lshlrev_b32 v{r[4]}, 4, v{r[4]}")
                st(f"v_mul_u32_u24 v{r[5]}, 20, v{r[1]}")
                st(f"v_add_u32 v{r[5]}, v{r[5]}, v{r[3]}")
                st(f"v_add_u32 v{r[6]}, 80, v{r[1]}")
                st(f"v_cmp_eq_u32 vcc, 20, v{r[3]}")
                st(f"v_cndmask_b32 v{r[5]}, v{r[5]}, v{r[6]}, vcc")
                st(f"v_mul_u32_u24 v{r[5]}, {KVP_PITCH}, v{r[5]}")
                st(f"v_add_u32 v{r[5]}, v{r[5]}, v{r[4]}")
                st(f"v_add_u32 v{r[5]}, {KVP}, v{r[5]}")
                st(f"v_add_u32 v{r[6]}, {4*KVP_PITCH}, v{r[5]}")
                st(f"v_mov_b32 v{r[7]}, {DUMMY}")
                st(f"v_cndmask_b32 v{r[6]}, v{r[7]}, v{r[6]}, vcc")
                st(f"v_cmp_gt_u32 vcc, 420, v{r[0]}")
                st(f"v_cndmask_b32 v{V_W+2*i}, v{r[7]}, v{r[5]}, vcc")
                st(f"v_cndmask_b32 v{V_W+2*i+1}, v{r[7]}, v{r[6]}, vcc")
    def hook(what):
        if what == "setup":
            setup_late(st, L)
            if typ == "A":
                srd(st, S_W1, P_WQKV, WQKV_BYTES); srd(st, S_W2, P_W1, W1_BYTES)
                st(f"s_mul_i32 s{S_K1}, s{S_WAVE}, {16*3840}")
                st(f"s_mul_i32 s{S_K2}, s{S_WAVE}, {16*3456}")
            else:
                srd(st, S_W1, P_W1, W1_BYTES); srd(st, S_W2, P_WQKV, WQKV_BYTES)
                st(f"s_mul_i32 s{S_K1}, s{S_WAVE}, {16*3456}")
                st(f"s_mul_i32 s{S_K2}, s{S_WAVE}, {16*3840}")
            if typ == "B":
                fmt_setup(st, L + typ + "_fmt")
                fmt_addr(st)
            dma_tables(st, typ)
            type_consts()
        elif what == "g0":
            return P.group(0).ops
        elif isinstance(what, tuple) and what[0] == "pf":
            if not WPREF: return []
            g = Stream(); prefetch_weights(g, typ)
            parts = []; cur = []
            for op in g.ops:
                cur.append(op)
                if op.kind == "vmem": parts.append(cur); cur = []
            k = what[1]
            return parts[2 * k] + parts[2 * k + 1]
        elif what == "g1":
            return P.group(1).ops
        elif what == "g12":
            ops = P.group(1).ops + P.group(2).ops
            g = Stream(); prefetch_weights(g, typ); ops += g.ops
            return ops
    if typ == "A":
        st(f"s_cmp_lg_u32 s{S_R}, 0")
        st(f"s_cbranch_scc1 {L}_nozero")
        for i in range(4): st(f"v_mov_b32 v{FR+i}, 0")
        st(f"v_lshlrev_b32 v{FR+4}, 4, v0")
        st(f"s_add_u32 s40, s{S_KV}, 4096")
        st(f"s_lshl_b32 s41, s{S_G}, 12")
        st(f"s_add_u32 s41, s41, {FL_OFF}")
        st(f"buffer_store_dwordx4 v[{FR}:{FR+3}], v{FR+4}, s[{S_WS}:{S_WS+3}], s{S_KV} offen sc0 sc1", note="cond")
        st(f"buffer_store_dwordx4 v[{FR}:{FR+3}], v{FR+4}, s[{S_WS}:{S_WS+3}], s40 offen sc0 sc1", note="cond")
        st(f"buffer_store_dwordx4 v[{FR}:{FR+3}], v{FR+4}, s[{S_WS}:{S_WS+3}], s41 offen sc0 sc1", note="cond")
        st("s_nop 1")
        st.label(f"{L}_nozero")
    x_phase(st, L, hook)
    stamp(st, 1)
    stamp(st, 6, "x")
    if typ == "A":
        def zsig(st):
            st(f"s_cmp_lg_u32 s{S_R}, 0")
            st(f"s_cbranch_scc1 {L}_nozsig")
            signal(st, L, "z", [f"s_mov_b32 s{S_T}, 0"], S_DBG, lanes=4, lane_stride=64)
            st.label(f"{L}_nozsig")
        P.after_barrier[0] = zsig
    flush(st, norm_groups(0)); flush(st, norm_groups(1))
    P.start(0)
    stamp(st, 2)
    fill = []
    for t in range(2, 40): fill += ([] if NONORM else norm_groups(t))

    if W2PF:
        prev0 = P.after_barrier.get(0)
        def hook0(st_):
            if prev0: prev0(st_)
            P.extra.extend(prefetch_w2_ops())
        P.after_barrier[0] = hook0
    if typ == "B" and not NOFMT:
        halves = fmt_finish_groups()
        P.after_barrier[FMT_STAGE] = lambda st_: P.extra.extend(fmt_dma_ops())
        t0 = FT_T0
        P.inject[t0] = halves[0][0]
        P.inject[t0 + 6] = halves[0][1]
        P.inject[t0 + 26] = halves[1][0]
        P.inject[t0 + 32] = halves[1][1]
    P.after_barrier[4] = lambda st_: preload(st_, L, "initp", INIT_SPEC, S_DBG)
    P.after_barrier[6] = lambda st_: poll(st_, L, "init", INIT_SPEC, 8, S_DBG, preloaded="initp")
    if FUSED and typ == "B":
        def fst_wait(st_):
            assert NOFMT or (not P.injq and not P.inject), "format stores not issued"
            st_.wait(vm="fst")
        P.before_barrier[FMT_STAGE + 8] = fst_wait
        P.after_barrier[FMT_STAGE + 8] = lambda st_: signal(st_, L, "w2", [f"s_and_b32 s{S_T}, s2, 7", f"s_lshl_b32 s{S_T}, s{S_T}, 7", f"s_add_u32 s{S_T}, s{S_T}, {FL_OFF + 128*FL_W2}"], S_WS)
    if typ == "A":
        rest = P.run(0, 200, fill, per_slot=4, lookahead_to=200, vm_takes_slot=False)
        assert not rest
        stamp(st, 3)
        stamp(st, 6, "p1")
        if DUMP_XN: dump_xn(st)
        kv_epilogue_A(st, L + "_A")
        stamp(st, 5)
        S = None
        if FUSED and EARLY:
            S = s2_make(L, "A")
            s2_ids(st, "A")
            S.setup(st)
            g = Stream()
            for i in range(S2D): S.addr(g, i, V_EA + i, V_EB + i)
            st.extend(g)
            poll(st, L, "w2c", W2C_SPEC, 16, S_WS, preloaded="w2cp")
            eb = Stream()
            for i in range(S2D): S.loadsB(eb, i, V_EB + i)
            P.after_barrier[10] = lambda st_: P.extra.extend(eb.ops)
        P.start(200)
        P.run(200, 240)
        P.drain_groups(keep_extra=True)
        st.wait(vm="kvat")
        st("s_barrier")
        signal(st, L, "kv", flag_off(FL_KVC, S_G), S_WS)
        if FUSED and EARLY:
            P.run(240, HB_SLOT - 12)
            P.drain_groups(keep_extra=True)
            preload(st, L, "hbp", flag_spec(FL_HB, S_R), S_WS)
            P.run(HB_SLOT - 12, HB_SLOT)
            P.drain_groups(keep_extra=True)
            assert not P.extra or HB_SLOT < 280
            if HB_SLOT == 280: P.drain_groups()
            poll(st, L, "hb", flag_spec(FL_HB, S_R), 8, S_WS, preloaded="hbp")
            st("s_barrier")
            ea = Stream()
            for i in range(S2D): S.loadsA(ea, i, V_EA + i)
            P.extra.extend(ea.ops)
            P.dense = True
            P.run(HB_SLOT, 280)
            P.drain_groups()
        else:
            P.run(240, 280)
        stamp(st, 6)
        if FUSED and not EARLY: preload(st, L, "startp", START_SPEC, S_WS)
        for b in range(2):
            flush(st, relu_pack_store(ACC2 + 16 * b, TMP + 8 + 8 * b, TMP, S_T + 8, 1024 * b))
        if FUSED: s2_part(st, L, "A", S, S2D if EARLY else 0)
    else:
        if FUSED:
            def hb_wait(st_):
                n = sum(1 for o in st_.ops[b_start:] if o.tag == "hst")
                assert n == 10, n
                st_.wait(vm="hst")
            b_start = len(st.ops)
            P.before_barrier[HB_STAGE] = hb_wait
            P.after_barrier[HB_STAGE] = lambda st_: signal(st_, L, "hb", flag_off(FL_HB, S_R), S_WS)
        rest = P.run(0, 200, fill, per_slot=4, vm_takes_slot=False)
        assert not rest
        stamp(st, 3)
        stamp(st, 6, "p1")
        fill = []
        for b in range(5):
            fill += relu_pack_store(ACC1 + 16 * b, TMP + 8 + 8 * (b & 1), TMP, S_T + 8 if b < 4 else S_T + 9, 1024 * (b & 3))
        P.run(200, 204, per_slot=0)
        rest = P.run(204, HB_FILL_END, fill, per_slot=HB_PER)
        flush(st, rest)
        P.run(HB_FILL_END, 300)
        P.drain_groups()
        if not FUSED: preload(st, L, "kvp", flag_spec(FL_KVC, S_G), S_WS)
        P.run(300, 320)
        if FUSED:
            preload(st, L, "startp", START_SPEC, S_WS)
            q_epilogue_B(st, L + "_B")
            st(f"v_mov_b32 v{V_OH}, v{V_H}")
            stamp(st, 4)
            s2_part(st, L, "B")
        else:
            o_epilogue_B(st, L + "_B")

S_RHO, S_ROT, S2_SB, S2_SQ = 98, 99, 96, 100
V_EA, V_EB = TMP + 30, TMP + 33

def s2_make(L, typ):
    segs = [(16, 10, True), (0, 4, False), (54, 5, False)]
    def own_signal(st_):
        st_.wait(vm="hst" if typ == "A" else "ost")
        st_("s_barrier")
        signal(st_, L, "own", flag_off(FL_HA if typ == "A" else FL_OB, S_R), S_WS)
    def check(name, line, pre):
        def f(st_):
            poll(st_, L, name, flag_spec(line, S_R), 8, S_WS, preloaded=pre)
            st_("s_barrier")
        return f
    def start_check(st_):
        poll(st_, L, "start", START_SPEC, (16, 8), S_WS, preloaded="startp")
        st_("s_barrier")
        stamp(st_, 2, "s2")
    def seq(*fs):
        def f(st_):
            for x in fs: x(st_)
        return f
    pre_ha = lambda st_: preload(st_, L, "hap", flag_spec(FL_HA, S_R), S_WS)
    pre_ob = lambda st_: preload(st_, L, "obp", flag_spec(FL_OB, S_R), S_WS)
    hooks = {}
    def add(step, kind, fn):
        h = hooks.setdefault(step, {})
        h[kind] = seq(h[kind], fn) if kind in h else fn
    add(10, "pre", check("ha", FL_HA, "hap"))
    add(14 - S2D - 2, "post", pre_ob)
    add(14, "pre", check("ob", FL_OB, "obp"))
    if typ == "A":
        if EARLY: add(0, "post", own_signal)
        else:
            add(0, "pre", start_check)
            hooks[("p", min(2, S2D - 1))] = own_signal
        add(10 - S2D - 2, "post", pre_ha)
    else:
        add(0, "pre", start_check)
        add(max(OSTEP - 2, 0), "post", lambda st_: preload(st_, L, "kvp", flag_spec(FL_KVC, S_G), S_WS))
        add(OSTEP, "post", lambda st_: o_block_B(st_, L, (TMP + 20, FR, 2, FR + 16, 2, 208, TMP + 32), "kvp"))
        add(max(OSTEP, 10 - S2D - 2), "post", pre_ha)
        add(OSTEP + 2, "post", own_signal)
    R = dict(ws=S_WS, x=S_X, out=S_FMT, c=S_G, rho=S_RHO, w=S_WAVE, lane=V_LANE, vA=3, vB=4, vL=5, vX=8, vR=10,
             acc=128, aring=256 - 36 * (S2D + 1), slot0=1, sA=24, sB=S2_SB, sT=S_T + 4, res=96, tmp=112,
             stamp0=3, sgroup="s2", rot=S_ROT, sQ=S2_SQ)
    return s2c.S2(R, segs, D=S2D, ldflags=S2FLAGS, hooks=hooks)

def s2_ids(st, typ):
    st(f"s_lshl_b32 s{S_RHO}, s{S_R}, 1")
    if typ == "B": st(f"s_add_u32 s{S_RHO}, s{S_RHO}, 1")
    st(f"s_and_b32 s{S_ROT}, s{S_RHO}, 7")
    st(f"s_and_b32 s{S_T}, s{S_G}, 3")
    st(f"s_lshl_b32 s{S_T}, s{S_T}, 1")
    st(f"s_add_u32 s{S_ROT}, s{S_ROT}, s{S_T}")
    if not S2ROT: st(f"s_mov_b32 s{S_ROT}, 0")

def s2_part(st, L, typ, S=None, issued=0):
    stamp(st, 1, "s2")
    srd(st, S_FMT, P_OUT, OUT_BYTES)
    if S is None:
        S = s2_make(L, typ)
        s2_ids(st, typ)
        S.setup(st)
    S.run(st, issued)

def gen_k1e(name="proj_kernel"):
    st = Stream()
    L = name
    setup_common(st, L)
    st("s_cmp_ge_u32 s2, 128")
    st(f"s_cbranch_scc1 {L}_B")
    s1_type(st, L + "_a", "A")
    st(f"s_branch {L}_end")
    st.label(f"{L}_B")
    s1_type(st, L + "_b", "B")
    st.label(f"{L}_end")
    stamp_flush(st, 0, S_WS, S_WAVE, 7)
    st.label(f"{L}_exit")
    st("s_endpgm")
    txt, npad = kernel_text(name, st)
    print("k1e: hazard pad states", npad)
    return txt, descriptor(name, 512, 256), dict(grid=256, block=256, lds=K1_LDS)
```

```python
from common import *

RED_BYTES = 4 * 15 * 1024

class S2:
    def __init__(self, R, segs, D=3, ldflags="", hooks=None):
        self.R = R; self.segs = segs; self.D = D; self.ld = ldflags; self.hooks = hooks or {}
        self.steps = [(k, li) for k, (b, nq, half) in enumerate(segs) for li in range(nq)]
        self.n = len(self.steps); self.NS = D + 1
    def slot(self, i): return self.R["aring"] + 36 * ((i + self.R.get("slot0", 0)) % self.NS)
    def setup(self, st):
        R = self.R; w = R["w"]; sT = R["sT"]; sA = R["sA"]; sB = R["sB"]; vL = R["vL"]
        for j in range(4):
            st(f"s_add_u32 s{sT}, s{w}, {j}")
            st(f"s_and_b32 s{sT}, s{sT}, 3")
            st(f"s_lshl_b32 s{sT+1}, s{R['rho']}, 2")
            st(f"s_add_u32 s{sT}, s{sT}, s{sT+1}")
            st(f"s_mul_i32 s{sT}, s{sT}, {NKB*1024}")
            st(f"s_add_u32 s{sA+j}, s{sT}, {HF_OFF}")
        st(f"s_mul_i32 s{sB}, s{R['c']}, {NKB*5120}")
        st(f"s_add_u32 s{sB}, s{sB}, {W2F_OFF}")
        st(f"s_add_u32 s{sB+1}, s{sB}, 4096")
        st(f"v_lshlrev_b32 v{vL}, 4, v{R['lane']}")
        st(f"s_lshl_b32 s{sT}, s{w}, 10")
        st(f"v_add_u32 v{vL+1}, s{sT}, v{vL}")
        st(f"s_mul_i32 s{sT}, s{w}, 5120")
        st(f"v_add_u32 v{vL+2}, s{sT}, v{vL}")
        st(f"s_cmp_ge_u32 s{w}, 2")
        st(f"s_cselect_b32 s{sT+2}, 0x40000000, 0")
    def addr(self, g, i, vA, vB):
        R = self.R; sT = R["sT"]; sQ = R["sQ"]; rot = R["rot"]; vL = R["vL"]
        k, li = self.steps[i]
        base, nq, half = self.segs[k]
        if li == 0:
            g(f"s_mul_i32 s{sT}, s{rot}, {-(-65536 // nq)}")
            g(f"s_lshr_b32 s{sT}, s{sT}, 16")
            g(f"s_mul_i32 s{sT}, s{sT}, {nq}")
            g(f"s_sub_u32 s{sQ}, s{rot}, s{sT}")
        else:
            g(f"s_add_u32 s{sQ}, s{sQ}, 1")
            g(f"s_cmp_eq_u32 s{sQ}, {nq}")
            g(f"s_cselect_b32 s{sQ}, 0, s{sQ}")
        g(f"s_lshl_b32 s{sT}, s{sQ}, 2")
        g(f"s_add_u32 s{sT}, s{sT}, {base}")
        g(f"s_mul_i32 s{sT+1}, s{sT}, 5120")
        g(f"s_lshl_b32 s{sT}, s{sT}, 10")
        if half:
            g(f"s_cmp_eq_u32 s{sQ}, {nq-1}")
            g(f"s_cselect_b32 s{sQ+1}, s{sT+2}, 0")
            g(f"s_add_u32 s{sT}, s{sT}, s{sQ+1}")
            g(f"s_add_u32 s{sT+1}, s{sT+1}, s{sQ+1}")
        g(f"v_add_u32 v{vA}, s{sT}, v{vL+1}")
        g(f"v_add_u32 v{vB}, s{sT+1}, v{vL+2}")
    def loadsB(self, g, i, vB):
        R = self.R; sws = R["ws"]; sB = R["sB"]; r = self.slot(i)
        for jj in range(5):
            sb = sB if jj < 4 else sB + 1
            g(f"buffer_load_dwordx4 a[{r+16+4*jj}:{r+16+4*jj+3}], v{vB}, s[{sws}:{sws+3}], s{sb} offen offset:{1024*(jj&3)}{self.ld}", tag=f"S{i}")
    def loadsA(self, g, i, vA):
        R = self.R; sws = R["ws"]; sA = R["sA"]; r = self.slot(i)
        for j in range(4):
            g(f"buffer_load_dwordx4 a[{r+4*j}:{r+4*j+3}], v{vA}, s[{sws}:{sws+3}], s{sA+j} offen{self.ld}", tag=f"S{i}")
    def group(self, i):
        g = Stream()
        if i >= self.n: return g
        self.addr(g, i, self.R["vA"], self.R["vB"])
        self.loadsB(g, i, self.R["vB"])
        self.loadsA(g, i, self.R["vA"])
        return g
    def late_setup(self, st):
        R = self.R; lane = R["lane"]; w = R["w"]; sT = R["sT"]; vX = R["vX"]; vR = R["vR"]; vL = R["vL"]
        RES = R["res"]; RED = R.get("red", 0); sx = R["x"]
        st(f"v_and_b32 v{vX}, 15, v{lane}")
        st(f"s_lshl_b32 s{sT}, s{R['rho']}, 6")
        st(f"s_lshl_b32 s{sT+1}, s{w}, 4")
        st(f"s_add_u32 s{sT}, s{sT}, s{sT+1}")
        st(f"v_add_u32 v{vX}, s{sT}, v{vX}")
        st(f"v_mul_u32_u24 v{vX}, 1280, v{vX}")
        st(f"v_lshrrev_b32 v{vX+1}, 4, v{lane}")
        st(f"v_lshl_add_u32 v{vX}, v{vX+1}, 3, v{vX}")
        st(f"s_mul_i32 s{sT}, s{R['c']}, 160")
        st(f"v_add_u32 v{vX}, s{sT}, v{vX}")
        for j in range(1, 4):
            st(f"s_add_u32 s{sT}, s{w}, {j}")
            st(f"s_and_b32 s{sT}, s{sT}, 3")
            st(f"s_mul_i32 s{sT}, s{sT}, 15360")
            st(f"s_add_u32 s{sT}, s{sT}, {RED + (j-1)*5120}")
            st(f"v_add_u32 v{vR+j-1}, s{sT}, v{vL}")
        st(f"s_mul_i32 s{sT}, s{w}, 15360")
        st(f"s_add_u32 s{sT}, s{sT}, {RED}")
        st(f"v_add_u32 v{vR+3}, s{sT}, v{vL}")
    def res_ops(self):
        R = self.R; g = Stream()
        for jj in range(5):
            g(f"buffer_load_dwordx2 v[{R['res']+2*jj}:{R['res']+2*jj+1}], v{R['vX']}, s[{R['x']}:{R['x']+3}], 0 offen offset:{32*jj}", tag="res")
        return g.ops
    def run(self, st, issued=0):
        R = self.R; D = self.D; n = self.n; hooks = self.hooks
        ACC = R["acc"]; vR = R["vR"]; vX = R["vX"]; RES = R["res"]; so = R["out"]
        for i in range(issued, D):
            if i in hooks and hooks[i].get("pre"): hooks[i]["pre"](st)
            st.extend(self.group(i))
            if ("p", i) in hooks: hooks[("p", i)](st)
        self.late_setup(st)
        if "after_prologue" in hooks: hooks["after_prologue"](st)
        stamp(st, R.get("stamp0", 1), R.get("sgroup", "main"))
        last = n - 1
        for i in range(n):
            if i in (5, 9, 10, 14): stamp(st, {5: 2, 9: 4, 10: 5, 14: 6}[i], "s2b")
            if i == 0: stamp(st, 1, "s2b")
            if i + D in hooks and hooks[i + D].get("pre"): hooks[i + D]["pre"](st)
            if i == 5: stamp(st, 3, "s2b")
            gq = self.group(i + D).ops
            if i == n - D - 1 + 1: gq = gq + self.res_ops()
            st.wait(vm=f"S{i}")
            r = self.slot(i)
            m = 0
            order = (0, 1, 2, 3) if i < last else (1, 2, 3, 0)
            wq = []
            for j in order:
                for jj in range(5):
                    acc = ACC + 20 * j + 4 * jj
                    cin = "0" if i == 0 else f"v[{acc}:{acc+3}]"
                    st(f"v_mfma_f32_16x16x32_bf16 v[{acc}:{acc+3}], a[{r+16+4*jj}:{r+16+4*jj+3}], a[{r+4*j}:{r+4*j+3}], {cin}")
                    m += 1
                    if m % 2 == 0:
                        while gq:
                            op = gq.pop(0); st.ops.append(op)
                            if op.kind == "vmem": break
                    if i == last and wq and m % 1 == 0 and len(wq) > 0 and m > 5 + 2:
                        st.ops.append(wq.pop(0))
                if i == last and j != 0:
                    for jj in range(5):
                        acc = ACC + 20 * j + 4 * jj
                        s = Stream(); s(f"ds_write_b128 v{vR+j-1}, v[{acc}:{acc+3}] offset:{1024*jj}", tag="rw")
                        wq.extend(s.ops)
            st.ops.extend(gq)
            if i == last: st.ops.extend(wq)
            if i in hooks and hooks[i].get("post"): hooks[i]["post"](st)
        stamp(st, R.get("stamp0", 1) + 1, R.get("sgroup", "main"))
        st.wait(lg="rw")
        st("s_barrier")
        T = ACC + 20
        for jj in range(5):
            for js in range(3):
                k = js * 5 + jj
                st(f"ds_read_b128 v[{T+4*k}:{T+4*k+3}], v{vR+3} offset:{1024*k}", tag=f"rr{k}")
        st.wait(vm="res")
        T2 = R["tmp"]
        for jj in range(5):
            acc = ACC + 4 * jj; r = RES + 2 * jj
            st(f"v_lshlrev_b32 v{T2}, 16, v{r}")
            st(f"v_and_b32 v{T2+1}, 0xffff0000, v{r}")
            st(f"v_lshlrev_b32 v{T2+2}, 16, v{r+1}")
            st(f"v_and_b32 v{T2+3}, 0xffff0000, v{r+1}")
            for i in range(4):
                st(f"v_add_f32 v{acc+i}, v{acc+i}, v{T2+i}")
            for js in range(3):
                k = js * 5 + jj
                st.wait(lg=f"rr{k}")
                for i in range(4):
                    st(f"v_add_f32 v{acc+i}, v{acc+i}, v{T+4*k+i}")
            st(f"v_cvt_pk_bf16_f32 v{r}, v{acc}, v{acc+1}")
            st(f"v_cvt_pk_bf16_f32 v{r+1}, v{acc+2}, v{acc+3}")
            st(f"buffer_store_dwordx2 v[{r}:{r+1}], v{vX}, s[{so}:{so+3}], 0 offen offset:{32*jj}")
```

```python
import sys, os
import common
if len(sys.argv) > 2 and sys.argv[2] == 'prof':
    common.PROF = True
    if len(sys.argv) > 3: common.STAMP_SET = sys.argv[3]
if os.environ.get('HWID'): common.HWID = True
from build import *
import k1e
k1e.FUSED = True
k1e.ST_FLAGS = " sc1"
if os.environ.get('WPREF') == '0': k1e.WPREF = False
if os.environ.get('TOUCH') == '0': k1e.TOUCH = False
if os.environ.get('FMT_STAGE'): k1e.FMT_STAGE = int(os.environ['FMT_STAGE'])
if os.environ.get('OSTEP'): k1e.OSTEP = int(os.environ['OSTEP'])
if os.environ.get('S2D'): k1e.S2D = int(os.environ['S2D'])
if 'S2FLAGS' in os.environ: k1e.S2FLAGS = os.environ['S2FLAGS']
if os.environ.get('S2ROT') == '0': k1e.S2ROT = False
if os.environ.get('EARLY') == '0': k1e.EARLY = False
if os.environ.get('FMTX'): k1e.FMTX = os.environ['FMTX']
if os.environ.get('FT'): k1e.FT_EVERY, k1e.FT_T0, k1e.FMT_STAGE = [int(x) for x in os.environ['FT'].split(',')]
if os.environ.get('PFJ'): k1e.PFJ = int(os.environ['PFJ'])
if os.environ.get('HB'): k1e.HB_SLOT, k1e.HB_STAGE, k1e.HB_FILL_END, k1e.HB_PER = [int(x) for x in os.environ['HB'].split(',')]
for k in ('NOSTATS', 'GLATE', 'NOFMT', 'NONORM', 'SAMEW', 'W2PF'):
    if os.environ.get(k) == '1': setattr(k1e, k, True)
if os.environ.get('VME'): k1e.VME_1, k1e.VME_A2, k1e.VME_B2 = [int(x) for x in os.environ['VME'].split(',')]
name = common.NAME + "_kernel"
t, d, l = k1e.gen_k1e(name)
hdr = open("cdna_kernels/" + common.NAME + ".s.ref").read().split("; Override launch")[0]
out = hdr + f"; @launch grid=({l['grid']},1,1) block=({l['block']},1,1) lds={l['lds']}\n"
out += '.amdgcn_target "amdgcn-amd-amdhsa--gfx950"\n.text\n' + t + '.section .rodata,"a"\n' + d
open(sys.argv[1], "w").write(out)
```

```python
from common import *
import s2b, s2c

SLOT = 20480
NSLOT, DIST, LOOK = 6, 4, 4
NFR = LOOK + 2
KVP = NSLOT * SLOT
KVP_PITCH = 336
K1_LDS = 163840
FT = KVP
LOG2E = 0x3fb8aa3b
EPS6 = 0x358637bd

for c in range(320): assert (c * 3277) >> 16 == c // 20
for c in range(192): assert (c * 5462) >> 16 == c // 12
for c in range(512): assert (c * 625) >> 16 == c // 105
for c in range(105): assert (c * 13108) >> 16 == c // 5
for c in range(1024): assert (c * 5669) >> 22 == c // 740

V_LANE = 2
V_D1 = 3
V_D2 = 8
V_H = 11
V_RS, V_C = 12, 13
V_T1 = 14
FR = 16
TMP = 40
V_T2 = 88
V_KVA = 90
V_Z = 91
V_W = 91
V_FLAG = 95
V_FOFF = 1
X = 96
ACC1 = 0
ACC2 = 80
S_X = 4; S_FMT = 8
S_WAVE = 14; S_G = 15; S_R = 16; S_XB = 17; S_M1 = 18; S_M2 = 19
S_WS = 20; S_W1 = 24; S_W2 = 28; S_DBG = 32
S_K1 = 36; S_K2 = 37; S_H = 38; S_XM = 39; S_T = 40
S_O = 50
S_EPS = 56; S_L2E = 57; S_KV = 58; S_HALF = 60
KA = 64
P_X, P_WQKV, P_WO, P_W1, P_W2, P_OUT, P_DBG = 64, 66, 68, 72, 74, 76, 78
P_WS = 12
SFD = (100, 101, 70, 71)
S_FTM = 59
S_PF = 44
S_GB = 55
V_FMT = TMP + 36
ST_FLAGS = ""

def one(txt, **kw):
    s = Stream(); s(txt, **kw); return s.ops

def relu_pack_store(acc, P, T, sbase, imm):
    G = []
    for p in range(8):
        t = T + 2 * (p & 1)
        G.append(one(f"v_accvgpr_read_b32 v{t}, a{acc+2*p}"))
        G.append(one(f"v_accvgpr_read_b32 v{t+1}, a{acc+2*p+1}"))
        G.append(one(f"v_cvt_pk_bf16_f32 v{P+p}, v{t}, v{t+1}"))
        G.append(one(f"v_pk_max_i16 v{P+p}, v{P+p}, 0"))
    for u in range(2):
        G.append(one(f"buffer_store_dwordx4 v[{P+4*u}:{P+4*u+3}], v{V_H}, s[{S_WS}:{S_WS+3}], s{sbase} offen offset:{imm+512*u}{ST_FLAGS}", tag="hst"))
    return G

def phi_groups(regs, tbase, ntmp=8):
    G = []
    n = len(regs)
    for i0 in range(0, n, ntmp):
        blk = regs[i0:i0+ntmp]
        for k, r in enumerate(blk): G.append(one(f"v_min_f32 v{tbase+k}, 0, v{r}"))
        for k, r in enumerate(blk): G.append(one(f"v_mul_f32 v{tbase+k}, s{S_L2E}, v{tbase+k}"))
        for k, r in enumerate(blk): G.append(one(f"v_exp_f32 v{tbase+k}, v{tbase+k}"))
        for k, r in enumerate(blk): G.append(one(f"v_max_f32 v{r}, 0, v{r}"))
        for k, r in enumerate(blk): G.append(one(f"v_add_f32 v{r}, s{S_EPS}, v{r}"))
        for k, r in enumerate(blk): G.append(one(f"v_add_f32 v{r}, v{r}, v{tbase+k}"))
    return G

def norm_groups(t):
    G = []
    for pr in range(2):
        r0, r1 = X + 4 * t + 2 * pr, X + 4 * t + 2 * pr + 1
        a = TMP
        G.append(one(f"v_lshlrev_b32 v{a}, 16, v{r0}"))
        G.append(one(f"v_and_b32 v{a+1}, 0xffff0000, v{r0}"))
        G.append(one(f"v_lshlrev_b32 v{a+2}, 16, v{r1}"))
        G.append(one(f"v_and_b32 v{a+3}, 0xffff0000, v{r1}"))
        for k in range(4):
            G.append(one(f"v_fma_f32 v{a+k}, v{a+k}, v{V_RS}, v{V_C}"))
        G.append(one(f"v_cvt_pk_bf16_f32 v{r0}, v{a}, v{a+1}"))
        G.append(one(f"v_cvt_pk_bf16_f32 v{r1}, v{a+2}, v{a+3}"))
    return G

def flush(st, groups):
    for g in groups: st.ops.extend(g)

def head(x): return x // 20

class Passes:
    def __init__(self, st, typ):
        self.st = st; self.typ = typ
        self.nb2 = 2 if typ == "A" else 3
        self.items = [(1, t, b) for t in range(40) for b in range(5)] + [(2, t, b) for t in range(40) for b in range(self.nb2)]
        self.pend = []; self.gq = []
        self.barriered = set()
        self.after_barrier = {}
        self.before_barrier = {}
        self.since = 99
        self.dense = False
        self.since_x = 99
        self.extra = []
        self.inject = {}
        self.injq = []
    def group(self, s):
        g = Stream()
        if s >= 20: return g
        slot = s % NSLOT
        if s < 10:
            g(f"s_add_u32 s{S_GB}, s{S_K1}, {(0 if SAMEW else s) * 64 * (3840 if self.typ == 'A' else 3456)}")
            for i in range(5):
                g(f"s_add_u32 m0, s{S_M1}, {slot*SLOT + 1024*i}")
                g(f"buffer_load_dwordx4 v{V_D1+i}, s[{S_W1}:{S_W1+3}], s{S_GB} offen lds", tag=f"G{s}")
        else:
            g(f"s_add_u32 s{S_GB}, s{S_K2}, {(s-10) * 64 * (3456 if self.typ == 'A' else 3840)}")
            for i in range(3):
                g(f"s_add_u32 m0, s{S_M2}, {slot*SLOT + 1024*i}")
                g(f"buffer_load_dwordx4 v{V_D2+i}, s[{S_W2}:{S_W2+3}], s{S_GB} offen lds", tag=f"G{s}")
        return g
    def frag(self, i): return FR + 4 * (i % NFR)
    def read(self, i):
        st = self.st
        p, t, b = self.items[i]
        s = (0 if p == 1 else 10) + t // 4
        slot = s % NSLOT
        pitch = 320 if p == 1 else 192
        off = slot * SLOT + (t & 3) * 16 * pitch + 64 * b
        base = V_T1 if p == 1 else V_T2
        if off >= 3 * SLOT: base += 1; off -= 3 * SLOT
        r = self.frag(i)
        if t % 4 == 0 and b == 0 and s not in self.barriered:
            self.barriered.add(s)
            assert s not in self.pend and not any(o.tag == f"G{s}" for o in self.gq), f"stage {s} not issued"
            st.wait(vm=f"G{s}")
            if s in self.before_barrier: self.before_barrier[s](st)
            st("s_barrier")
            if s in (1, 3, 5, 7, 9): stamp(st, {1: 1, 3: 2, 5: 3, 7: 4, 9: 5}[s], "p1")
            if s == 0:
                if GLATE: self.pend.append(2)
                self.pend.append(3)
            self.pend.append(s + DIST)
            if s in self.after_barrier: self.after_barrier[s](st)
        st(f"ds_read_b64_tr_b16 v[{r}:{r+1}], v{base} offset:{off}", tag=f"F{i}")
        st(f"ds_read_b64_tr_b16 v[{r+2}:{r+3}], v{base} offset:{off + 4*pitch}", tag=f"F{i}")
    def start(self, i0):
        for i in range(i0, i0 + LOOK): self.read(i)
    def run(self, lo, hi, fillers=None, per_slot=2, lookahead_to=None, vm_takes_slot=True):
        st = self.st
        fillers = fillers if fillers is not None else []
        lim = lookahead_to if lookahead_to is not None else len(self.items)
        for i in range(lo, hi):
            p, t, b = self.items[i]
            while self.pend:
                self.gq.extend(self.group(self.pend.pop(0)).ops)
            if i in self.inject:
                assert not any(o.tag == "ft" for o in self.extra + self.gq), "format tile not issued"
                self.injq.extend(self.inject.pop(i))
            st.wait(lg=f"F{i}")
            r = self.frag(i)
            acc = (ACC1 if p == 1 else ACC2) + 16 * b
            cin = "0" if t == 0 else f"a[{acc}:{acc+15}]"
            W = f"v[{r}:{r+3}]"; Xr = f"v[{X+4*t}:{X+4*t+3}]"
            if p == 1 and self.typ == "A":
                st(f"v_mfma_f32_32x32x16_bf16 a[{acc}:{acc+15}], {Xr}, {W}, {cin}")
            else:
                st(f"v_mfma_f32_32x32x16_bf16 a[{acc}:{acc+15}], {W}, {Xr}, {cin}")
            used = 0
            every = 4 if p == 1 else (VME_A2 if self.typ == "A" else VME_B2)
            if p == 1: every = VME_1 if (i >= 40 or not GLATE) else 2
            if self.dense: every = 1
            self.since += 1
            self.since_x += 1
            q = None
            if self.gq and self.since >= every:
                q = self.gq; self.since = 0
            elif self.extra and self.since_x >= (1 if self.dense else (FT_EVERY if p == 1 else max(every, 2))) and (self.since > 0 or not self.gq):
                q = self.extra; self.since_x = 0
            while q:
                op = q.pop(0); st.ops.append(op)
                if op.kind == "vmem":
                    used = 1 if vm_takes_slot else 0
                    break
            if i + LOOK < lim: self.read(i + LOOK)
            if self.injq:
                isst = any(o.kind == "vmem" for o in self.injq[0])
                if not isst or (i % 4 == 2 and used == 0 and self.since > 0):
                    st.ops.extend(self.injq.pop(0))
            for _ in range(per_slot - used):
                if fillers: st.ops.extend(fillers.pop(0))
        return fillers
    def drain_groups(self, keep_extra=False):
        while self.pend:
            self.gq.extend(self.group(self.pend.pop(0)).ops)
        if self.extra and not keep_extra:
            self.gq.extend(self.extra); self.extra = []
        self.st.ops.extend(self.gq); self.gq = []

V_FTGT = TMP + 28
KVREGS = (110, 111)
V_SIG = TMP + 4
def flag_regs(ftgt, sig):
    global V_FTGT, V_SIG
    V_FTGT = ftgt; V_SIG = sig
def _flag_addr(st, spec, VF):
    lines, stride, lanes, extra = spec
    for ln in lines: st(ln)
    if lanes == 1:
        st(f"v_mov_b32 v{VF[1]}, s{S_T}")
    else:
        st(f"v_mul_u32_u24 v{VF[1]}, {stride}, v{V_LANE}")
        st(f"v_add_u32 v{VF[1]}, s{S_T}, v{VF[1]}")
        if extra:
            for ln in extra: st(ln)
            st(f"v_mov_b32 v{V_FTGT}, s{S_T+1}")
            st(f"v_cmp_eq_u32 vcc, {lanes-1}, v{V_LANE}")
            st(f"v_cndmask_b32 v{VF[1]}, v{VF[1]}, v{V_FTGT}, vcc")

def preload(st, L, name, spec, srd, regs=None):
    VF = regs or (V_FLAG, V_FOFF)
    st(f"s_cmp_lg_u32 s{S_WAVE}, 0")
    st(f"s_cbranch_scc1 {L}_{name}_pre")
    _flag_addr(st, spec, VF)
    lanes = spec[2]
    st(f"s_mov_b64 exec, {(1 << lanes) - 1}")
    st(f"buffer_load_dword v{VF[0]}, v{VF[1]}, s[{srd}:{srd+3}], 0 offen sc0 sc1", note="cond")
    st("s_mov_b64 exec, -1")
    st.label(f"{L}_{name}_pre")
    st.mark(name)

def poll(st, L, name, spec, targets, srd, preloaded=None, regs=None):
    VF = regs or (V_FLAG, V_FOFF)
    lanes = spec[2]
    mask = (1 << lanes) - 1
    st(f"s_cmp_lg_u32 s{S_WAVE}, 0")
    st(f"s_cbranch_scc1 {L}_{name}_ok")
    if isinstance(targets, tuple):
        st(f"v_mov_b32 v{V_FTGT}, {targets[0]}")
        st(f"v_mov_b32 v{V_FTGT+1}, {targets[1]}")
        st(f"v_cmp_eq_u32 vcc, {lanes-1}, v{V_LANE}")
        st(f"v_cndmask_b32 v{V_FTGT}, v{V_FTGT}, v{V_FTGT+1}, vcc")
    else:
        st(f"v_mov_b32 v{V_FTGT}, {targets}")
    st(f"s_mov_b64 exec, {mask}")
    if preloaded:
        st.waitmark(preloaded)
        st(f"v_cmp_ge_u32 vcc, v{VF[0]}, v{V_FTGT}")
        st(f"s_cmp_eq_u64 vcc, {mask}")
        st(f"s_cbranch_scc1 {L}_{name}_done")
    st(f"s_mov_b32 s{S_T+2}, 0")
    import common
    if common.HWID:
        k = {"init": 0, "kv": 1, "start": 2, "ha": 3, "ob": 4, "w2c": 5, "hb": 6}[name]
        st(f"s_or_b32 s3, s3, {1 << k}")
    st.label(f"{L}_{name}_spin")
    st(f"buffer_load_dword v{VF[0]}, v{VF[1]}, s[{srd}:{srd+3}], 0 offen sc0 sc1", note="cond")
    st("s_waitcnt vmcnt(0)", note="cond")
    st(f"v_cmp_ge_u32 vcc, v{VF[0]}, v{V_FTGT}")
    st(f"s_add_u32 s{S_T+2}, s{S_T+2}, 1")
    st(f"s_cmp_ge_u32 s{S_T+2}, 0x40000")
    st(f"s_cbranch_scc1 {L}_{name}_done")
    st(f"s_cmp_eq_u64 vcc, {mask}")
    st(f"s_cbranch_scc0 {L}_{name}_spin")
    st.label(f"{L}_{name}_done")
    st("s_mov_b64 exec, -1")
    st.label(f"{L}_{name}_ok")

def flag_off(line_base, sreg):
    return [f"s_lshl_b32 s{S_T}, s{sreg}, 7", f"s_add_u32 s{S_T}, s{S_T}, {FL_OFF + 128*line_base}"]
def flag_spec(line_base, sreg): return (flag_off(line_base, sreg), 0, 1, None)

INIT_SPEC = ([f"s_and_b32 s{S_T}, s2, 3", f"s_lshl_b32 s{S_T}, s{S_T}, 6"], 0, 1, None)
W2C_SPEC = ([f"s_mov_b32 s{S_T}, {FL_OFF + 128*FL_W2}"], 128, 8, None)
START_SPEC = ([f"s_mov_b32 s{S_T}, {FL_OFF + 128*FL_W2}"], 128, 9,
              [f"s_lshl_b32 s{S_T+1}, s{S_R}, 7", f"s_add_u32 s{S_T+1}, s{S_T+1}, {FL_OFF + 128*FL_HB}"])

def signal(st, L, name, off_lines, srd, lanes=1, lane_stride=0):
    st(f"s_cmp_lg_u32 s{S_WAVE}, 0")
    st(f"s_cbranch_scc1 {L}_{name}_sig")
    st(f"v_mov_b32 v{V_SIG}, 1")
    for ln in off_lines: st(ln)
    if lane_stride:
        st(f"v_mul_u32_u24 v{V_SIG+1}, {lane_stride}, v{V_LANE}")
        st(f"v_add_u32 v{V_SIG+1}, s{S_T}, v{V_SIG+1}")
    else:
        st(f"v_mov_b32 v{V_SIG+1}, s{S_T}")
    st(f"s_mov_b64 exec, {(1 << lanes) - 1}")
    st(f"buffer_atomic_add v{V_SIG}, v{V_SIG+1}, s[{srd}:{srd+3}], 0 offen", note="cond")
    st("s_mov_b64 exec, -1")
    st.label(f"{L}_{name}_sig")

class Groups:
    def __init__(self): self.G = []
    def one(self, txt, **kw): self.G.append(one(txt, **kw))
    def stream(self, fn):
        s = Stream(); fn(s); self.G.append(s.ops)
    def ext(self, groups): self.G.extend(groups)

def kv_groups_A(L):
    g = Groups()
    PK = [TMP, TMP + 8, TMP + 16]; VB = [TMP + 24, TMP + 32, TMP + 40]
    VAL = FR; T = FR + 16
    for vb, b in ((0, 2), (1, 3), (2, 4)):
        a = ACC1 + 16 * b
        for i in range(16): g.one(f"v_accvgpr_read_b32 v{VAL+i}, a{a+i}")
        for p in range(8): g.one(f"v_cvt_pk_bf16_f32 v{VB[vb]+p}, v{VAL+2*p}, v{VAL+2*p+1}")
    g.one(f"v_mov_b32 v{T}, 0x3f803f80")
    for p in range(8): g.one(f"v_cndmask_b32 v{VB[0]+p}, v{VB[0]+p}, v{T}, s[{S_HALF+2}:{S_HALF+3}]")
    for kb in range(3):
        a = ACC1 + 16 * kb
        for i in range(16): g.one(f"v_accvgpr_read_b32 v{VAL+i}, a{a+i}")
        g.ext(phi_groups([VAL + i for i in range(16)], T, 8))
        for p in range(8): g.one(f"v_cvt_pk_bf16_f32 v{PK[kb]+p}, v{VAL+2*p}, v{VAL+2*p+1}")
    tiles = [(0, 0), (0, 1), (1, 1), (1, 2), (2, 2), (1, 0), (2, 0)]
    DT = [16 * i for i in range(7)]
    for tau in range(2):
        for n, (kd, ve) in enumerate(tiles):
            d = DT[n]
            cin = "0" if tau == 0 else f"a[{d}:{d+15}]"
            g.one(f"v_mfma_f32_32x32x16_bf16 a[{d}:{d+15}], v[{PK[kd]+4*tau}:{PK[kd]+4*tau+3}], v[{VB[ve]+4*tau}:{VB[ve]+4*tau+3}], {cin}")
    eoff = {0: -16, 1: 16, 2: 48}
    def masked(mask, txt):
        def f(s):
            s(f"s_mov_b32 exec_lo, 0x{mask & 0xffffffff:x}")
            s(f"s_mov_b32 exec_hi, 0x{mask >> 32:x}")
            s(txt, tag="kvw")
            s("s_mov_b64 exec, -1")
        g.stream(f)
    for n, (kd, ve) in enumerate(tiles):
        for q in range(4):
            r = DT[n] + 4 * q
            if n < 5:
                mask = 0
                for l in range(64):
                    c, h = l & 31, l >> 5
                    d = 32 * kd + 8 * q + 4 * h
                    if d >= 80 or (ve == 0 and c < 16): continue
                    e = eoff[ve] + c
                    if e < 80 and head(e) == head(d): mask |= 1 << l
                if mask: masked(mask, f"ds_write_b128 v{V_KVA}, a[{r}:{r+3}] offset:{80*(eoff[ve]+16) + 128*kd + 32*q}")
            if ve == 0:
                byhead = {}
                for h in range(2):
                    d = 32 * kd + 8 * q + 4 * h
                    if d < 80: byhead[head(d)] = byhead.get(head(d), 0) | (1 << (32 * h))
                for hd, mask in byhead.items():
                    masked(mask, f"ds_write_b128 v{V_Z}, a[{r}:{r+3}] offset:{1600*hd + 1600 + 128*kd + 32*q}")
    def bar(s):
        s.wait(lg="kvw")
        s("s_barrier")
    g.stream(bar)
    A0 = TMP + 4
    g.one(f"v_lshlrev_b32 v{A0}, 2, v0")
    g.one(f"v_add_u32 v{A0+1}, {KVP}, v{A0}")
    RB = FR
    for i in range(6):
        for wv in range(4):
            g.one(f"ds_read_b32 v{RB+4*i+wv}, v{A0+1} offset:{7168*wv + 1024*i}", tag=f"kr{i}")
    for wv in range(4):
        g.one(f"ds_read_b32 v{TMP+8+wv}, v{A0+1} offset:{7168*wv + 1024*6}", tag="kr6")
    g.one(f"s_add_u32 s{S_T+2}, s{S_KV}, 4096")
    for i in range(7):
        r = RB + 4 * i if i < 6 else TMP + 8
        def red(s, i=i, r=r):
            s.wait(lg=f"kr{i}")
            s(f"v_add_f32 v{r}, v{r}, v{r+1}")
            s(f"v_add_f32 v{r+2}, v{r+2}, v{r+3}")
            s(f"v_add_f32 v{r}, v{r}, v{r+2}")
            sreg = S_KV if i < 4 else S_T + 2
            s(f"buffer_atomic_add_f32 v{r}, v{A0}, s[{S_WS}:{S_WS+3}], s{sreg} offen offset:{1024*(i&3)}", tag="kvat")
        g.stream(red)
    return g.G

def kv_epilogue_A(st, L):
    G = kv_groups_A(L)
    flush(st, G)

def q_groups_B():
    g = Groups()
    PQ = TMP; VAL = FR; T = FR + 16
    for b in (2, 0, 1):
        a = ACC2 + 16 * b
        n = 16 if b < 2 else 8
        for i in range(n): g.one(f"v_accvgpr_read_b32 v{VAL+i}, a{a+i}")
        g.ext(phi_groups([VAL + i for i in range(n)], T, 8))
        for p in range(n // 2): g.one(f"v_cvt_pk_bf16_f32 v{PQ+8*b+p}, v{VAL+2*p}, v{VAL+2*p+1}")
    for i in range(4): g.one(f"v_mov_b32 v{VAL+i}, 0")
    g.one(f"v_lshlrev_b32 v{T}, 4, v0")
    g.one(f"v_add_u32 v{T}, {KVP}, v{T}")
    for i in range(8): g.one(f"ds_write_b128 v{T}, v[{VAL}:{VAL+3}] offset:{4096*i}", tag="z")
    return g.G

def q_epilogue_B(st, L):
    flush(st, q_groups_B())

def o_groups_B(L, regs, preloaded):
    g = Groups()
    PQ = TMP
    T, RT, NRT, AF, NAF, DT, RD = regs
    def head_part(st):
        poll(st, L, "kv", flag_spec(FL_KVC, S_G), 16, S_WS, preloaded=preloaded, regs=KVREGS)
        st.wait(lg="z")
        st("s_barrier")
        stamp(st, 5)
        st(f"v_lshlrev_b32 v{T}, 4, v0")
        st(f"s_add_u32 s{S_T+2}, s{S_KV}, 4096")
        st(f"buffer_load_dwordx4 v[{T+4}:{T+7}], v{T}, s[{S_WS}:{S_WS+3}], s{S_KV} offen sc0 sc1", tag="kvl0")
        st(f"buffer_load_dwordx4 v[{T+8}:{T+11}], v{T}, s[{S_WS}:{S_WS+3}], s{S_T+2} offen sc0 sc1", tag="kvl1")
    g.stream(head_part)
    head_groups = g.G; g.G = []
    def stage(st):
        st.wait(vm="kvl0")
        st(f"ds_write_b128 v{V_W}, v[{T+4}:{T+7}]", tag="kvw")
        st(f"ds_write_b128 v{V_W+1}, v[{T+4}:{T+7}]", tag="kvw")
        st.wait(vm="kvl1")
        st(f"ds_write_b128 v{V_W+2}, v[{T+8}:{T+11}]", tag="kvw")
        st(f"ds_write_b128 v{V_W+3}, v[{T+8}:{T+11}]", tag="kvw")
        st.wait(lg="kvw")
        st("s_barrier")
    g.stream(stage)
    frs = [(0, 0), (0, 1), (0, 2), (1, 1), (1, 2), (1, 3), (1, 4), (2, 0), (2, 1), (2, 2), (2, 3), (2, 4)]
    def rd(n):
        E, tp = frs[n]
        r = RT + 8 * (n % NRT)
        off = 32 * E * KVP_PITCH + 64 * tp
        g.one(f"ds_read_b128 v[{r}:{r+3}], v{V_KVA} offset:{off}", tag=f"kf{n}")
        g.one(f"ds_read_b128 v[{r+4}:{r+7}], v{V_KVA} offset:{off+32}", tag=f"kf{n}")
    for n in range(NRT): rd(n)
    first = {0: True, 1: True, 2: True}
    for n, (E, tp) in enumerate(frs):
        r = RT + 8 * (n % NRT); f = AF + 4 * (n % NAF)
        def cv(s, n=n, r=r, f=f):
            s.wait(lg=f"kf{n}")
            for k in range(4): s(f"v_cvt_pk_bf16_f32 v{f+k}, v{r+2*k}, v{r+2*k+1}")
        g.stream(cv)
        if n + NRT < 12: rd(n + NRT)
        q = PQ + 8 * (tp >> 1) + 4 * (tp & 1)
        d = DT + 16 * E
        cin = "0" if first[E] else f"v[{d}:{d+15}]"
        first[E] = False
        g.one(f"v_mfma_f32_32x32x16_bf16 v[{d}:{d+15}], v[{f}:{f+3}], v[{q}:{q+3}], {cin}")
    d2 = DT + 32
    for h in range(4): g.one(f"v_add_f32 v{RD+h}, s{S_EPS}, v{d2+8+h}")
    for h in range(4): g.one(f"v_rcp_f32 v{RD+h}, v{RD+h}")
    g.one(f"v_cndmask_b32 v{RD+4}, v{RD+0}, v{RD+1}, s[{S_HALF}:{S_HALF+1}]")
    g.one(f"v_cndmask_b32 v{RD+5}, v{RD+2}, v{RD+3}, s[{S_HALF}:{S_HALF+1}]")
    sel = {0: RD, 1: RD, 2: RD + 4, 3: RD + 1, 4: RD + 1, 5: RD + 2, 6: RD + 2, 7: RD + 5, 8: RD + 3, 9: RD + 3}
    for hb in range(5):
        a = DT + 16 * (hb >> 1) + 8 * (hb & 1)
        for i in range(8):
            Q = 2 * hb + (i >> 2)
            g.one(f"v_mul_f32 v{a+i}, v{a+i}, v{sel[Q]}")
        for p in range(4): g.one(f"v_cvt_pk_bf16_f32 v{a+p}, v{a+2*p}, v{a+2*p+1}")
        g.one(f"buffer_store_dwordx4 v[{a}:{a+3}], v{V_OH}, s[{S_WS}:{S_WS+3}], s{S_O+hb} offen{ST_FLAGS}", tag="ost")
    return head_groups, g.G

def o_block_B(st, L, regs, preloaded):
    h, b = o_groups_B(L, regs, preloaded)
    flush(st, h); flush(st, b)

V_OH = TMP + 38

def o_epilogue_B(st, L):
    q_epilogue_B(st, L)
    stamp(st, 4)
    st(f"v_mov_b32 v{V_OH}, v{V_H}")
    o_block_B(st, L, (X + 128, X + 48, 4, X, 4, X + 80, X + 140), "kvp")

def fmt_setup(st, L):
    st("s_sub_u32 s40, s2, 128")
    st("s_lshl_b32 s40, s40, 2")
    st(f"s_add_u32 s40, s40, s{S_WAVE}")
    st("s_mul_i32 s98, s40, 52429")
    st("s_lshr_b32 s98, s98, 18")
    st("s_mul_i32 s41, s98, 5")
    st("s_sub_u32 s99, s40, s41")
    st("s_lshl_b32 s45, s98, 5")
    st("s_add_u32 s46, s45, 16")
    st(f"s_mov_b32 s{S_FMT}, s{P_W2}")
    st(f"s_mov_b32 s{S_FMT+1}, s{P_W2+1}")
    st(f"s_mov_b32 s{S_FMT+2}, {W2_BYTES}")
    st(f"s_mov_b32 s{S_FMT+3}, 0x20000")
    st("s_cmp_lt_u32 s98, 54")
    st(f"s_cbranch_scc1 {L}_rows")
    st(f"s_mov_b32 s{S_FMT}, s{P_WO}")
    st(f"s_mov_b32 s{S_FMT+1}, s{P_WO+1}")
    st(f"s_mov_b32 s{S_FMT+2}, {WO_BYTES}")
    st("s_sub_u32 s42, s98, 54")
    st("s_mul_i32 s43, s42, 52429")
    st("s_lshr_b32 s43, s43, 18")
    st("s_mul_i32 s41, s43, 5")
    st("s_sub_u32 s42, s42, s41")
    st("s_mul_i32 s43, s43, 160")
    T0 = [0, 32, 64, 80, 112]; T1 = [16, 48, 144, 96, 128]
    st(f"s_mov_b32 s45, {T0[0]}")
    st(f"s_mov_b32 s46, {T1[0]}")
    for f in range(1, 5):
        st(f"s_cmp_eq_u32 s42, {f}")
        st(f"s_cselect_b32 s45, {T0[f]}, s45")
        st(f"s_cselect_b32 s46, {T1[f]}, s46")
    st("s_add_u32 s45, s45, s43")
    st("s_add_u32 s46, s46, s43")
    st.label(f"{L}_rows")
    st("s_lshl_b32 s41, s99, 8")
    for u in range(2):
        st(f"s_mul_i32 s42, s{45+u}, 1280")
        st(f"s_add_u32 s{96+u}, s42, s41")
    st("s_cmp_ge_u32 s40, 370")
    st(f"s_cselect_b32 s{S_FMT+2}, 0, s{S_FMT+2}")
    st("s_cselect_b32 s100, 0x40000000, 0")

def fmt_dma_ops():
    g = Stream()
    v = V_FMT
    for i in range(8):
        g(f"s_add_u32 s101, s{96 + (i >> 2)}, {5120 * (i & 3)}")
        g(f"s_add_u32 m0, s{S_FTM}, {1024*i}")
        g(f"buffer_load_dwordx4 v{v}, s[{S_FMT}:{S_FMT+3}], s101 offen lds", tag="ft")
    return g.ops

def fmt_addr(st):
    v = V_FMT; l = V_LANE; a = TMP + 34
    st(f"v_lshrrev_b32 v{v}, 4, v{l}")
    st(f"v_mul_u32_u24 v{v}, 1280, v{v}")
    st(f"v_and_b32 v{a}, 15, v{l}")
    st(f"v_lshl_add_u32 v{v}, v{a}, 4, v{v}")
    st(f"s_lshl_b32 s{S_FTM}, s{S_WAVE}, 13")
    st(f"s_add_u32 s{S_FTM}, s{S_FTM}, {FT}")
    st(f"v_lshrrev_b32 v{a}, 4, v{l}")
    st(f"v_lshrrev_b32 v{v+1}, 1, v{a}")
    st(f"v_and_b32 v{a}, 1, v{a}")
    st(f"v_lshlrev_b32 v{v+1}, 4, v{v+1}")
    st(f"v_lshl_add_u32 v{v+1}, v{a}, 2, v{v+1}")
    st(f"v_bfe_u32 v{a}, v{l}, 2, 2")
    st(f"v_add_u32 v{v+1}, v{v+1}, v{a}")
    st(f"v_lshlrev_b32 v{v+1}, 8, v{v+1}")
    st(f"v_and_b32 v{a}, 3, v{l}")
    st(f"v_lshl_add_u32 v{v+1}, v{a}, 3, v{v+1}")
    st(f"v_add_u32 v{v+1}, s{S_FTM}, v{v+1}")
    st(f"v_lshlrev_b32 v{v+2}, 4, v{l}")

def fmt_finish_groups():
    v = V_FMT; D0 = TMP + 8
    halves = []
    for hf in range(2):
        G = []; ST = []
        for jj in range(4):
            j = 4 * hf + jj
            s = Stream()
            if j == 0: s.wait(vm="ft")
            s(f"ds_read_b64_tr_b16 v[{D0+4*jj}:{D0+4*jj+1}], v{v+1} offset:{32*j}", tag=f"fr{j}")
            s(f"ds_read_b64_tr_b16 v[{D0+4*jj+2}:{D0+4*jj+3}], v{v+1} offset:{32*j+2048}", tag=f"fr{j}")
            G.append(s.ops)
            s = Stream()
            s("s_lshl_b32 s43, s99, 3")
            s(f"s_add_u32 s43, s43, {j}")
            s("s_mul_i32 s47, s43, 52429")
            s("s_lshr_b32 s47, s47, 18")
            s("s_mul_i32 s101, s47, 5")
            s("s_sub_u32 s43, s43, s101")
            s(f"s_mul_i32 s47, s47, {NKB}")
            s("s_add_u32 s47, s47, s98")
            s("s_mul_i32 s47, s47, 5")
            s("s_add_u32 s47, s47, s43")
            s("s_lshl_b32 s47, s47, 10")
            s("s_add_u32 s47, s47, s100")
            s(f"s_add_u32 s47, s47, {W2F_OFF}")
            s.wait(lg=f"fr{j}")
            s(f"buffer_store_dwordx4 v[{D0+4*jj}:{D0+4*jj+3}], v{v+2}, s[{S_WS}:{S_WS+3}], s47 offen{ST_FLAGS}", tag="fst")
            ST.append(s.ops)
        halves.append((G, ST))
    return halves

XREG0 = SLOT
def x_region(j):
    return XREG0 + 16384 * (j if j < 8 else j - 5)

def x_phase(st, L, hook):
    l = V_LANE
    vXa, vXb, vXR, SUM, SQ = TMP + 4, TMP + 5, TMP + 6, TMP + 14, TMP + 18
    def chunk_ops(j):
        g = Stream()
        for i in range(4):
            g(f"s_add_u32 s{S_T+1}, s{S_XB}, {8*i*1280 + 128*j}")
            g(f"s_add_u32 m0, s{S_XM}, {x_region(j) + 1024*i}")
            g(f"buffer_load_dwordx4 v{vXa + (i & 1)}, s[{S_X}:{S_X+3}], s{S_T+1} offen lds", tag=f"X{j}")
        return g.ops
    def chunk(j): st.ops.extend(chunk_ops(j))
    if TOUCH:
        st(f"s_and_b32 s40, s{S_G}, 3")
        st("s_lshr_b32 s41, s2, 7")
        st("s_lshl_b32 s41, s41, 2")
        st("s_add_u32 s40, s40, s41")
        st("s_mul_i32 s40, s40, 20480")
        st(f"s_mul_i32 s41, s{S_R}, 163840")
        st("s_add_u32 s40, s40, s41")
        st(f"v_lshlrev_b32 v{TMP+22}, 4, v0")
        for i in range(5):
            st(f"buffer_load_dwordx4 v[{TMP+24}:{TMP+27}], v{TMP+22}, s[{S_X}:{S_X+3}], s40 offen", tag="touch")
            if i < 4: st("s_add_u32 s40, s40, 4096")
    st(f"v_lshrrev_b32 v{TMP}, 3, v{l}")
    st(f"v_lshrrev_b32 v{TMP+1}, 4, v{l}")
    st(f"v_and_b32 v{TMP+2}, 7, v{l}")
    st(f"v_xor_b32 v{TMP+2}, v{TMP+2}, v{TMP+1}")
    st(f"v_mul_u32_u24 v{TMP}, 1280, v{TMP}")
    st(f"v_lshl_add_u32 v{vXa}, v{TMP+2}, 4, v{TMP}")
    st(f"v_xor_b32 v{TMP+2}, 4, v{TMP+2}")
    st(f"v_lshl_add_u32 v{vXb}, v{TMP+2}, 4, v{TMP}")
    for j in range(2): chunk(j)
    stamp(st, 1, "x")
    hook("setup")
    st(f"v_and_b32 v{TMP}, 31, v{l}")
    st(f"v_bfe_u32 v{TMP+1}, v{l}, 1, 3")
    st(f"v_lshrrev_b32 v{TMP+2}, 5, v{l}")
    st(f"v_lshlrev_b32 v{TMP}, 7, v{TMP}")
    st(f"v_add_u32 v{TMP}, s{S_XM}, v{TMP}")
    for tt in range(4):
        st(f"v_add_u32 v{TMP+3}, {2*tt}, v{TMP+2}")
        st(f"v_xor_b32 v{TMP+3}, v{TMP+3}, v{TMP+1}")
        st(f"v_lshl_add_u32 v{vXR+tt}, v{TMP+3}, 4, v{TMP}")
        st(f"v_add_u32 v{vXR+4+tt}, {XREG0}, v{vXR+tt}")
    for tt in range(4):
        st(f"v_add_u32 v{vXR+tt}, {XREG0 + 65536}, v{vXR+tt}")
    SUM, SQ = TMP + 14, TMP + 18
    for k in range(4):
        st(f"v_mov_b32 v{SUM+k}, 0")
        st(f"v_mov_b32 v{SQ+k}, 0")
    stamp(st, 2, "x")
    for j in range(2, 5): chunk(j)
    stamp(st, 3, "x")
    def stats(j, q):
        for i in range(16):
            if i % 2 == 0:
                while q:
                    op = q.pop(0); st.ops.append(op)
                    if op.kind == "vmem": break
            r = X + 16 * j + i
            if NOSTATS: continue
            st(f"v_dot2c_f32_bf16 v{SUM+(i&3)}, 0x3f803f80, v{r}")
            st(f"v_dot2c_f32_bf16 v{SQ+(i&3)}, v{r}, v{r}")
    def reads(j):
        off = x_region(j) - XREG0
        base = vXR + 4
        if off >= 65536: base = vXR; off -= 65536
        for tt in range(4):
            r = X + 16 * j + 4 * tt
            st(f"ds_read_b128 v[{r}:{r+3}], v{base+tt} offset:{off}", tag=f"xr{j}")
    q = []
    for j in range(10):
        st.wait(vm=f"X{j}")
        if j == 0: stamp(st, 4, "x")
        if j == 9: stamp(st, 5, "x")
        reads(j)
        if j > 0:
            st.wait(lg=f"xr{j-1}")
            if j + 4 <= 9: q += chunk_ops(j + 4)
            if GLATE and PFJ <= j < PFJ + 3: q += hook(("pf", j - PFJ))
            if j == 6:
                st("s_barrier")
                q += hook("g0")
            if j == 7 and not GLATE: q += hook("g12")
            stats(j - 1, q)
    st.ops.extend(q); q = []
    st.wait(lg="xr9")
    stats(9, hook("g1") if GLATE else [])
    st(f"v_add_f32 v{SUM}, v{SUM}, v{SUM+1}")
    st(f"v_add_f32 v{SUM+2}, v{SUM+2}, v{SUM+3}")
    st(f"v_add_f32 v{SQ}, v{SQ}, v{SQ+1}")
    st(f"v_add_f32 v{SQ+2}, v{SQ+2}, v{SQ+3}")
    st(f"v_add_f32 v{SUM}, v{SUM}, v{SUM+2}")
    st(f"v_add_f32 v{SQ}, v{SQ}, v{SQ+2}")
    st(f"v_mov_b32 v{SUM+1}, v{SUM}")
    st(f"v_mov_b32 v{SQ+1}, v{SQ}")
    st(f"v_permlane32_swap_b32 v{SUM}, v{SUM+1}")
    st(f"v_permlane32_swap_b32 v{SQ}, v{SQ+1}")
    st(f"v_add_f32 v{SUM}, v{SUM}, v{SUM+1}")
    st(f"v_add_f32 v{SQ}, v{SQ}, v{SQ+1}")
    st(f"v_mul_f32 v{SUM}, 0x3acccccd, v{SUM}")
    st(f"v_mul_f32 v{SQ}, 0x3acccccd, v{SQ}")
    st(f"v_fma_f32 v{SQ}, -v{SUM}, v{SUM}, v{SQ}")
    st(f"v_max_f32 v{SQ}, 0, v{SQ}")
    st(f"v_cvt_pk_bf16_f32 v{SUM}, v{SUM}, v{SQ}")
    st(f"v_and_b32 v{SQ}, 0xffff0000, v{SUM}")
    st(f"v_lshlrev_b32 v{SUM}, 16, v{SUM}")
    st(f"v_add_f32 v{SQ}, 0x3727c5ac, v{SQ}")
    st(f"v_cvt_pk_bf16_f32 v{SQ}, v{SQ}, v{SQ}")
    st(f"v_lshlrev_b32 v{SQ}, 16, v{SQ}")
    st(f"v_sqrt_f32 v{SQ}, v{SQ}")
    st(f"v_cvt_pk_bf16_f32 v{SQ}, v{SQ}, v{SQ}")
    st(f"v_lshlrev_b32 v{SQ}, 16, v{SQ}")
    st(f"v_rcp_f32 v{V_RS}, v{SQ}")
    st(f"v_mul_f32 v{V_C}, v{SUM}, v{V_RS}")
    st(f"v_sub_f32 v{V_C}, 0, v{V_C}")

def setup_common(st, L):
    st("s_cmp_ge_u32 s2, 256")
    st(f"s_cbranch_scc1 {L}_exit")
    stamp(st, 0)
    st("s_mov_b32 s3, 0")
    st(f"s_load_dwordx16 s[{KA}:{KA+15}], s[0:1], 0")
    st(f"s_load_dwordx2 s[{P_WS}:{P_WS+1}], s[0:1], {KA_WS}")
    st("v_lshrrev_b32 v1, 6, v0")
    st(f"v_and_b32 v{V_LANE}, 63, v0")
    st(f"v_readfirstlane_b32 s{S_WAVE}, v1")
    if CODEPF:
        st("s_getpc_b64 s[96:97]")
        st.label(f"{L}_pc")
        st("s_lshr_b32 s40, s2, 3")
        st("s_lshl_b32 s40, s40, 2")
        st(f"s_add_u32 s40, s40, s{S_WAVE}")
        st("s_and_b32 s40, s40, 127")
        st(f"s_mul_i32 s41, s40, {-(-65536 // CODE_SLICES)}")
        st("s_lshr_b32 s41, s41, 16")
        st(f"s_mul_i32 s41, s41, {CODE_SLICES}")
        st("s_sub_u32 s40, s40, s41")
        st("s_lshl_b32 s40, s40, 11")
        st(f"v_lshrrev_b32 v3, 2, v{V_LANE}")
        st("v_lshlrev_b32 v3, 7, v3")
        st("v_add_u32 v3, s40, v3")
        st(f"v_min_u32 v3, {L}_exit - {L}_pc, v3")
        st(f"global_load_dword v{TMP+39}, v3, s[96:97]", tag="codepf")
    st("s_and_b32 s40, s2, 7")
    st("s_lshr_b32 s41, s2, 3")
    st("s_lshr_b32 s42, s40, 1")
    st("s_lshl_b32 s42, s42, 2")
    st("s_and_b32 s43, s41, 3")
    st(f"s_add_u32 s{S_R}, s42, s43")
    st("s_and_b32 s42, s40, 1")
    st("s_lshl_b32 s42, s42, 2")
    st("s_bfe_u32 s43, s41, 0x20002")
    st(f"s_add_u32 s{S_G}, s42, s43")
    st(f"s_lshl_b32 s42, s{S_R}, 2")
    st(f"s_add_u32 s42, s42, s{S_WAVE}")
    st(f"s_mul_i32 s{S_XB}, s42, {32*1280}")
    st(f"s_mul_i32 s{S_H}, s42, {2*NKB*1024}")
    st(f"s_add_u32 s{S_H}, s{S_H}, {HF_OFF}")
    st(f"s_lshl_b32 s{S_XM}, s{S_WAVE}, 12")
    st(f"s_mul_i32 s{S_M1}, s{S_WAVE}, 5120")
    st(f"s_mul_i32 s{S_M2}, s{S_WAVE}, 3072")
    st(f"s_lshl_b32 s{S_KV}, s{S_G}, 13")
    st(f"s_add_u32 s{S_KV}, s{S_KV}, {KV_OFF}")
    st.waitall(vm=False)
    srd(st, S_X, P_X, X_BYTES)
    srd(st, S_WS, P_WS, WS_USED)

def setup_late(st, L):
    l = V_LANE
    srd(st, S_DBG, P_DBG, 256)
    st(f"s_mov_b32 s{S_EPS}, 0x{EPS6:x}")
    st(f"s_mov_b32 s{S_L2E}, 0x{LOG2E:x}")
    st(f"s_mov_b32 s{S_HALF}, 0")
    st(f"s_mov_b32 s{S_HALF+1}, -1")
    st(f"s_mov_b32 s{S_HALF+2}, 0x0000ffff")
    st(f"s_mov_b32 s{S_HALF+3}, 0x0000ffff")
    a, b, c = FR, FR + 1, FR + 2
    st(f"v_lshrrev_b32 v{a}, 5, v{l}")
    st(f"v_lshlrev_b32 v{a}, 3, v{a}")
    st(f"v_bfe_u32 v{b}, v{l}, 2, 2")
    st(f"v_add_u32 v{a}, v{a}, v{b}")
    st(f"v_bfe_u32 v{b}, v{l}, 4, 1")
    st(f"v_lshlrev_b32 v{b}, 5, v{b}")
    st(f"v_and_b32 v{c}, 3, v{l}")
    st(f"v_lshl_add_u32 v{b}, v{c}, 3, v{b}")
    st(f"v_mul_u32_u24 v{c}, 320, v{a}")
    st(f"v_add_u32 v{V_T1}, v{c}, v{b}")
    st(f"v_add_u32 v{V_T1+1}, {3*SLOT}, v{V_T1}")
    st(f"v_mul_u32_u24 v{c}, 192, v{a}")
    st(f"v_add_u32 v{V_T2}, v{c}, v{b}")
    st(f"v_add_u32 v{V_T2+1}, {3*SLOT}, v{V_T2}")
    st(f"v_bfe_u32 v{a}, v{l}, 4, 1")
    st(f"v_mul_u32_u24 v{a}, {NKB*1024}, v{a}")
    st(f"v_and_b32 v{b}, 15, v{l}")
    st(f"v_lshl_add_u32 v{a}, v{b}, 4, v{a}")
    st(f"v_lshrrev_b32 v{b}, 5, v{l}")
    st(f"v_lshl_add_u32 v{V_H}, v{b}, 8, v{a}")

def dma_tables(st, typ):
    l = V_LANE
    a, b, c, d = FR, FR + 1, FR + 2, FR + 3
    if typ == "A":
        st(f"s_mul_i32 s40, s{S_G}, 160")
        st("s_add_u32 s40, s40, 1280")
        st(f"s_lshl_b32 s41, s{S_G}, 7")
    else:
        st(f"s_mul_i32 s44, s{S_G}, 5")
        st("s_add_u32 s44, s44, 16")
        st(f"s_cmp_eq_u32 s{S_G}, 6")
        st("s_cselect_b32 s44, 45, s44")
        st(f"s_cmp_eq_u32 s{S_G}, 7")
        st("s_cselect_b32 s44, 49, s44")
        st("s_lshl_b32 s40, s44, 6")
        st(f"s_mul_i32 s41, s{S_G}, 160")
    for i in range(5):
        st(f"v_add_u32 v{a}, {64*i}, v{l}")
        st(f"v_mul_u32_u24 v{b}, 3277, v{a}")
        st(f"v_lshrrev_b32 v{b}, 16, v{b}")
        st(f"v_mul_u32_u24 v{c}, 20, v{b}")
        st(f"v_sub_u32 v{c}, v{a}, v{c}")
        st(f"v_mul_u32_u24 v{b}, {3840 if typ == 'A' else 3456}, v{b}")
        st(f"v_lshl_add_u32 v{b}, v{c}, 4, v{b}")
        if typ == "A":
            st(f"v_cmp_le_u32 vcc, 10, v{c}")
            st(f"v_add_u32 v{d}, 1120, v{b}")
            st(f"v_cndmask_b32 v{b}, v{b}, v{d}, vcc")
        st(f"v_add_u32 v{V_D1+i}, s40, v{b}")
    for i in range(3):
        st(f"v_add_u32 v{a}, {64*i}, v{l}")
        st(f"v_mul_u32_u24 v{b}, 5462, v{a}")
        st(f"v_lshrrev_b32 v{b}, 16, v{b}")
        st(f"v_mul_u32_u24 v{c}, 12, v{b}")
        st(f"v_sub_u32 v{c}, v{a}, v{c}")
        if typ == "A":
            st(f"v_and_b32 v{c}, 7, v{c}")
        else:
            st(f"v_subrev_u32 v{d}, 10, v{c}")
            st(f"v_cmp_gt_u32 vcc, 10, v{c}")
            st(f"v_cndmask_b32 v{c}, v{d}, v{c}, vcc")
        st(f"v_mul_u32_u24 v{b}, {3456 if typ == 'A' else 3840}, v{b}")
        st(f"v_lshl_add_u32 v{b}, v{c}, 4, v{b}")
        st(f"v_add_u32 v{V_D2+i}, s41, v{b}")

def prefetch_weights(st, typ):
    v = TMP + 22
    sq, s1 = (S_W1, S_W2) if typ == "A" else (S_W2, S_W1)
    st(f"v_lshlrev_b32 v{v}, 4, v0")
    if WPREF:
        st("s_mul_i32 s42, s2, 9600")
        st("s_mul_i32 s43, s2, 8640")
        for i in range(3):
            st(f"buffer_load_dwordx4 v[{TMP+24}:{TMP+27}], v{v}, s[{sq}:{sq+3}], s42 offen", tag="pf")
            st("s_add_u32 s42, s42, 3200")
            st(f"buffer_load_dwordx4 v[{TMP+28}:{TMP+31}], v{v}, s[{s1}:{s1+3}], s43 offen", tag="pf")
            st("s_add_u32 s43, s43, 2880")

def prefetch_w2_ops():
    g = Stream()
    v = TMP + 22
    g(f"s_mov_b32 s{S_PF}, s{P_W2}")
    g(f"s_mov_b32 s{S_PF+1}, s{P_W2+1}")
    g(f"s_mov_b32 s{S_PF+2}, {W2_BYTES}")
    g(f"s_mov_b32 s{S_PF+3}, 0x20000")
    g(f"v_lshlrev_b32 v{v}, 4, v0")
    g("s_mul_i32 s43, s2, 8640")
    for i in range(3):
        g(f"buffer_load_dwordx4 v[{TMP+24}:{TMP+27}], v{v}, s[{S_PF}:{S_PF+3}], s43 offen", tag="pf")
        g("s_add_u32 s43, s43, 2880")
    g(f"s_mov_b32 s{S_PF}, s{P_WO}")
    g(f"s_mov_b32 s{S_PF+1}, s{P_WO+1}")
    g(f"s_mov_b32 s{S_PF+2}, {WO_BYTES}")
    g("s_mul_i32 s43, s2, 3200")
    g(f"buffer_load_dwordx4 v[{TMP+24}:{TMP+27}], v{v}, s[{S_PF}:{S_PF+3}], s43 offen", tag="pf")
    return g.ops

DUMP_XN = False
CODEPF = True
CODE_SLICES = 36
HIDE = True
KSTEP = 7
KBUDGET = 6
OBUDGET = 5
HB_SLOT = 252
HB_STAGE, HB_FILL_END, HB_PER = 18, 280, 3
PFJ = 1
NOSTATS = False
GLATE = False
FT_EVERY = 3
FT_T0 = 110
FMTX = ""
EARLY = True
S2D = 3
S2FLAGS = " sc1"
S2ROT = True
OSTEP = 6
W2PF = False
FMT_STAGE = 1
VME_1, VME_A2, VME_B2 = 3, 2, 3
SAMEW = False
FUSED = False
TOUCH = True
NOFMT = False
NONORM = False
WPREF = True
def dump_xn(st):
    st(f"v_lshlrev_b32 v{TMP}, 4, v{V_LANE}")
    st(f"s_lshl_b32 s40, s{S_R}, 2")
    st(f"s_add_u32 s40, s40, s{S_WAVE}")
    st("s_mul_i32 s40, s40, 40960")
    for t in range(40):
        st(f"buffer_store_dwordx4 v[{X+4*t}:{X+4*t+3}], v{TMP}, s[{S_WS}:{S_WS+3}], s40 offen")
        st("s_add_u32 s40, s40, 1024")

def s1_type(st, L, typ):
    l = V_LANE
    P = Passes(st, typ)
    def type_consts():
        if typ == "A":
            st(f"s_mul_i32 s40, s{S_WAVE}, 7168")
            st(f"s_add_u32 s40, s40, {KVP}")
            a, b = FR + 8, FR + 9
            st(f"v_and_b32 v{a}, 31, v{l}")
            st(f"v_lshrrev_b32 v{b}, 5, v{l}")
            st(f"v_lshlrev_b32 v{b}, 4, v{b}")
            st(f"v_add_u32 v{V_Z}, s40, v{b}")
            st(f"v_mul_u32_u24 v{a}, 80, v{a}")
            st(f"v_add_u32 v{a}, v{a}, v{V_Z}")
            st(f"v_subrev_u32 v{V_KVA}, 1280, v{a}")
            st(f"s_lshl_b32 s{S_T+8}, s{S_G}, 11")
            st(f"s_add_u32 s{S_T+8}, s{S_T+8}, s{S_H}")
        else:
            st("s_lshl_b32 s44, s44, 10")
            st(f"s_add_u32 s{S_T+8}, s44, s{S_H}")
            st(f"s_add_u32 s{S_T+9}, s{S_T+8}, 4096")
            st(f"s_lshr_b32 s40, s{S_G}, 1")
            st("s_mul_i32 s40, s40, 5120")
            st(f"s_add_u32 s40, s40, {54*1024}")
            st(f"s_add_u32 s40, s40, s{S_H}")
            st(f"s_bitcmp1_b32 s{S_G}, 0")
            ev = [0, 512, 1024, 1536, 2048]; od = [3072, 3584, 4096, 4608, 2560]
            for hb in range(5):
                st(f"s_mov_b32 s{S_O+hb}, {ev[hb]}")
                st(f"s_cmov_b32 s{S_O+hb}, {od[hb]}")
            for hb in range(5):
                st(f"s_add_u32 s{S_O+hb}, s{S_O+hb}, s40")
            a = FR + 8
            st(f"v_and_b32 v{a}, 31, v{l}")
            st(f"v_mul_u32_u24 v{a}, {KVP_PITCH}, v{a}")
            st(f"v_lshrrev_b32 v{a+1}, 5, v{l}")
            st(f"v_lshl_add_u32 v{a}, v{a+1}, 4, v{a}")
            st(f"v_add_u32 v{V_KVA}, {KVP}, v{a}")
            DUMMY = KVP + 96 * KVP_PITCH
            r = [a + k for k in range(8)]
            for i in range(2):
                st(f"v_add_u32 v{r[0]}, {256*i}, v0")
                st(f"v_mul_u32_u24 v{r[1]}, 625, v{r[0]}")
                st(f"v_lshrrev_b32 v{r[1]}, 16, v{r[1]}")
                st(f"v_mul_u32_u24 v{r[2]}, 105, v{r[1]}")
                st(f"v_sub_u32 v{r[2]}, v{r[0]}, v{r[2]}")
                st(f"v_mul_u32_u24 v{r[3]}, 13108, v{r[2]}")
                st(f"v_lshrrev_b32 v{r[3]}, 16, v{r[3]}")
                st(f"v_mul_u32_u24 v{r[4]}, 5, v{r[3]}")
                st(f"v_sub_u32 v{r[4]}, v{r[2]}, v{r[4]}")
                st(f"v_mul_u32_u24 v{r[5]}, 5, v{r[1]}")
                st(f"v_add_u32 v{r[4]}, v{r[4]}, v{r[5]}")
                st(f"v_lshlrev_b32 v{r[4]}, 4, v{r[4]}")
                st(f"v_mul_u32_u24 v{r[5]}, 20, v{r[1]}")
                st(f"v_add_u32 v{r[5]}, v{r[5]}, v{r[3]}")
                st(f"v_add_u32 v{r[6]}, 80, v{r[1]}")
                st(f"v_cmp_eq_u32 vcc, 20, v{r[3]}")
                st(f"v_cndmask_b32 v{r[5]}, v{r[5]}, v{r[6]}, vcc")
                st(f"v_mul_u32_u24 v{r[5]}, {KVP_PITCH}, v{r[5]}")
                st(f"v_add_u32 v{r[5]}, v{r[5]}, v{r[4]}")
                st(f"v_add_u32 v{r[5]}, {KVP}, v{r[5]}")
                st(f"v_add_u32 v{r[6]}, {4*KVP_PITCH}, v{r[5]}")
                st(f"v_mov_b32 v{r[7]}, {DUMMY}")
                st(f"v_cndmask_b32 v{r[6]}, v{r[7]}, v{r[6]}, vcc")
                st(f"v_cmp_gt_u32 vcc, 420, v{r[0]}")
                st(f"v_cndmask_b32 v{V_W+2*i}, v{r[7]}, v{r[5]}, vcc")
                st(f"v_cndmask_b32 v{V_W+2*i+1}, v{r[7]}, v{r[6]}, vcc")
    def hook(what):
        if what == "setup":
            setup_late(st, L)
            if typ == "A":
                srd(st, S_W1, P_WQKV, WQKV_BYTES); srd(st, S_W2, P_W1, W1_BYTES)
                st(f"s_mul_i32 s{S_K1}, s{S_WAVE}, {16*3840}")
                st(f"s_mul_i32 s{S_K2}, s{S_WAVE}, {16*3456}")
            else:
                srd(st, S_W1, P_W1, W1_BYTES); srd(st, S_W2, P_WQKV, WQKV_BYTES)
                st(f"s_mul_i32 s{S_K1}, s{S_WAVE}, {16*3456}")
                st(f"s_mul_i32 s{S_K2}, s{S_WAVE}, {16*3840}")
            if typ == "B":
                fmt_setup(st, L + typ + "_fmt")
                fmt_addr(st)
            dma_tables(st, typ)
            type_consts()
        elif what == "g0":
            return P.group(0).ops
        elif isinstance(what, tuple) and what[0] == "pf":
            if not WPREF: return []
            g = Stream(); prefetch_weights(g, typ)
            parts = []; cur = []
            for op in g.ops:
                cur.append(op)
                if op.kind == "vmem": parts.append(cur); cur = []
            k = what[1]
            return parts[2 * k] + parts[2 * k + 1]
        elif what == "g1":
            return P.group(1).ops
        elif what == "g12":
            ops = P.group(1).ops + P.group(2).ops
            g = Stream(); prefetch_weights(g, typ); ops += g.ops
            return ops
    if typ == "A":
        st(f"s_cmp_lg_u32 s{S_R}, 0")
        st(f"s_cbranch_scc1 {L}_nozero")
        for i in range(4): st(f"v_mov_b32 v{FR+i}, 0")
        st(f"v_lshlrev_b32 v{FR+4}, 4, v0")
        st(f"s_add_u32 s40, s{S_KV}, 4096")
        st(f"s_lshl_b32 s41, s{S_G}, 12")
        st(f"s_add_u32 s41, s41, {FL_OFF}")
        st(f"buffer_store_dwordx4 v[{FR}:{FR+3}], v{FR+4}, s[{S_WS}:{S_WS+3}], s{S_KV} offen sc0 sc1", note="cond")
        st(f"buffer_store_dwordx4 v[{FR}:{FR+3}], v{FR+4}, s[{S_WS}:{S_WS+3}], s40 offen sc0 sc1", note="cond")
        st(f"buffer_store_dwordx4 v[{FR}:{FR+3}], v{FR+4}, s[{S_WS}:{S_WS+3}], s41 offen sc0 sc1", note="cond")
        st("s_nop 1")
        st.label(f"{L}_nozero")
    x_phase(st, L, hook)
    stamp(st, 1)
    stamp(st, 6, "x")
    if typ == "A":
        def zsig(st):
            st(f"s_cmp_lg_u32 s{S_R}, 0")
            st(f"s_cbranch_scc1 {L}_nozsig")
            signal(st, L, "z", [f"s_mov_b32 s{S_T}, 0"], S_DBG, lanes=4, lane_stride=64)
            st.label(f"{L}_nozsig")
        P.after_barrier[0] = zsig
    flush(st, norm_groups(0)); flush(st, norm_groups(1))
    P.start(0)
    stamp(st, 2)
    fill = []
    for t in range(2, 40): fill += ([] if NONORM else norm_groups(t))

    if W2PF:
        prev0 = P.after_barrier.get(0)
        def hook0(st_):
            if prev0: prev0(st_)
            P.extra.extend(prefetch_w2_ops())
        P.after_barrier[0] = hook0
    if typ == "B" and not NOFMT:
        halves = fmt_finish_groups()
        P.after_barrier[FMT_STAGE] = lambda st_: P.extra.extend(fmt_dma_ops())
        t0 = FT_T0
        P.inject[t0] = halves[0][0]
        P.inject[t0 + 6] = halves[0][1]
        P.inject[t0 + 26] = halves[1][0]
        P.inject[t0 + 32] = halves[1][1]
    P.after_barrier[4] = lambda st_: preload(st_, L, "initp", INIT_SPEC, S_DBG)
    P.after_barrier[6] = lambda st_: poll(st_, L, "init", INIT_SPEC, 8, S_DBG, preloaded="initp")
    if FUSED and typ == "B":
        def fst_wait(st_):
            assert NOFMT or (not P.injq and not P.inject), "format stores not issued"
            st_.wait(vm="fst")
        P.before_barrier[FMT_STAGE + 8] = fst_wait
        P.after_barrier[FMT_STAGE + 8] = lambda st_: signal(st_, L, "w2", [f"s_and_b32 s{S_T}, s2, 7", f"s_lshl_b32 s{S_T}, s{S_T}, 7", f"s_add_u32 s{S_T}, s{S_T}, {FL_OFF + 128*FL_W2}"], S_WS)
    if typ == "A":
        if FUSED and HIDE:
            rest = P.run(0, 200, fill, per_slot=4, vm_takes_slot=False)
            assert not rest
            stamp(st, 3)
            stamp(st, 6, "p1")
            P.run(200, 268)
            P.drain_groups()
            preload(st, L, "startp", START_SPEC, S_WS)
            P.run(268, 280)
            stamp(st, 6)
            for b in range(2):
                flush(st, relu_pack_store(ACC2 + 16 * b, TMP + 8 + 8 * b, TMP, S_T + 8, 1024 * b))
            s2_part(st, L, "A")
            return
        rest = P.run(0, 200, fill, per_slot=4, lookahead_to=200, vm_takes_slot=False)
        assert not rest
        stamp(st, 3)
        stamp(st, 6, "p1")
        if DUMP_XN: dump_xn(st)
        kv_epilogue_A(st, L + "_A")
        if FUSED and EARLY: preload(st, L, "w2cp", W2C_SPEC, S_WS)
        stamp(st, 5)
        S = None
        if FUSED and EARLY:
            S = s2_make(L, "A")
            s2_ids(st, "A")
            S.setup(st)
            g = Stream()
            for i in range(S2D): S.addr(g, i, V_EA + i, V_EB + i)
            st.extend(g)
            poll(st, L, "w2c", W2C_SPEC, 16, S_WS, preloaded="w2cp")
            eb = Stream()
            for i in range(S2D): S.loadsB(eb, i, V_EB + i)
            P.after_barrier[10] = lambda st_: P.extra.extend(eb.ops)
        P.start(200)
        P.run(200, 240)
        P.drain_groups(keep_extra=True)
        st.wait(vm="kvat")
        st("s_barrier")
        signal(st, L, "kv", flag_off(FL_KVC, S_G), S_WS)
        if FUSED and EARLY:
            P.run(240, HB_SLOT - 12)
            P.drain_groups(keep_extra=True)
            preload(st, L, "hbp", flag_spec(FL_HB, S_R), S_WS)
            P.run(HB_SLOT - 12, HB_SLOT)
            P.drain_groups(keep_extra=True)
            assert not P.extra or HB_SLOT < 280
            if HB_SLOT == 280: P.drain_groups()
            poll(st, L, "hb", flag_spec(FL_HB, S_R), 8, S_WS, preloaded="hbp")
            st("s_barrier")
            ea = Stream()
            for i in range(S2D): S.loadsA(ea, i, V_EA + i)
            P.extra.extend(ea.ops)
            P.dense = True
            P.run(HB_SLOT, 280)
            P.drain_groups()
        else:
            P.run(240, 280)
        stamp(st, 6)
        if FUSED and not EARLY: preload(st, L, "startp", START_SPEC, S_WS)
        for b in range(2):
            flush(st, relu_pack_store(ACC2 + 16 * b, TMP + 8 + 8 * b, TMP, S_T + 8, 1024 * b))
        if FUSED: s2_part(st, L, "A", S, S2D if EARLY else 0)
    else:
        if FUSED:
            def hb_wait(st_):
                n = sum(1 for o in st_.ops[b_start:] if o.tag == "hst")
                assert n == 10, n
                st_.wait(vm="hst")
            b_start = len(st.ops)
            P.before_barrier[HB_STAGE] = hb_wait
            P.after_barrier[HB_STAGE] = lambda st_: signal(st_, L, "hb", flag_off(FL_HB, S_R), S_WS)
        rest = P.run(0, 200, fill, per_slot=4, vm_takes_slot=False)
        assert not rest
        stamp(st, 3)
        stamp(st, 6, "p1")
        fill = []
        for b in range(5):
            fill += relu_pack_store(ACC1 + 16 * b, TMP + 8 + 8 * (b & 1), TMP, S_T + 8 if b < 4 else S_T + 9, 1024 * (b & 3))
        P.run(200, 204, per_slot=0)
        rest = P.run(204, HB_FILL_END, fill, per_slot=HB_PER)
        flush(st, rest)
        P.run(HB_FILL_END, 300)
        P.drain_groups()
        if not FUSED: preload(st, L, "kvp", flag_spec(FL_KVC, S_G), S_WS, regs=KVREGS)
        P.run(300, 320)
        if FUSED:
            preload(st, L, "startp", START_SPEC, S_WS)
            if not HIDE: q_epilogue_B(st, L + "_B")
            st(f"v_mov_b32 v{V_OH}, v{V_H}")
            stamp(st, 4)
            s2_part(st, L, "B")
        else:
            o_epilogue_B(st, L + "_B")

S_RHO, S_ROT, S2_SB, S2_SQ = 98, 99, 96, 100
V_EA, V_EB = TMP + 30, TMP + 33

def s2_make(L, typ):
    segs = [(16, 10, True), (0, 4, False), (54, 5, False)]
    def own_signal(st_):
        st_.wait(vm="hst" if typ == "A" else "ost")
        st_("s_barrier")
        signal(st_, L, "own", flag_off(FL_HA if typ == "A" else FL_OB, S_R), S_WS)
    def check(name, line, pre):
        def f(st_):
            poll(st_, L, name, flag_spec(line, S_R), 8, S_WS, preloaded=pre)
            st_("s_barrier")
        return f
    def start_check(st_):
        poll(st_, L, "start", START_SPEC, (16, 8), S_WS, preloaded="startp")
        st_("s_barrier")
        stamp(st_, 2, "s2")
    def seq(*fs):
        def f(st_):
            for x in fs: x(st_)
        return f
    pre_ha = lambda st_: preload(st_, L, "hap", flag_spec(FL_HA, S_R), S_WS)
    pre_ob = lambda st_: preload(st_, L, "obp", flag_spec(FL_OB, S_R), S_WS)
    hooks = {}
    def add(step, kind, fn):
        h = hooks.setdefault(step, {})
        h[kind] = seq(h[kind], fn) if kind in h else fn
    add(10, "pre", check("ha", FL_HA, "hap"))
    add(14 - S2D - 2, "post", pre_ob)
    add(14, "pre", check("ob", FL_OB, "obp"))
    fill = {}
    if HIDE:
        add(0, "pre", start_check)
        if typ == "A":
            add(0, "post", own_signal)
            fill[0] = kv_groups_A(L)
            def kv_signal(st_):
                st_.wait(vm="kvat")
                st_("s_barrier")
                signal(st_, L, "kv", flag_off(FL_KVC, S_G), S_WS)
            add(KSTEP, "post", kv_signal)
            add(10 - S2D - 2, "post", pre_ha)
        else:
            fill[0] = q_groups_B()
            h, b = o_groups_B(L, (TMP + 20, FR, 2, FR + 16, 2, 208, TMP + 32), "kvp")
            add(OSTEP - 1, "post", lambda st_: preload(st_, L, "kvp", flag_spec(FL_KVC, S_G), S_WS, regs=KVREGS))
            add(OSTEP, "post", lambda st_: flush(st_, h))
            fill[OSTEP + 1] = b
            add(10 - S2D - 2, "post", pre_ha)
            assert OSTEP + 4 < 14 - S2D, "the o signal must precede the o check"
            add(OSTEP + 4, "post", own_signal)
    elif typ == "A":
        if EARLY: add(0, "post", own_signal)
        else:
            add(0, "pre", start_check)
            hooks[("p", min(2, S2D - 1))] = own_signal
        add(10 - S2D - 2, "post", pre_ha)
    else:
        add(0, "pre", start_check)
        add(max(OSTEP - 2, 0), "post", lambda st_: preload(st_, L, "kvp", flag_spec(FL_KVC, S_G), S_WS, regs=KVREGS))
        add(OSTEP, "post", lambda st_: o_block_B(st_, L, (TMP + 20, FR, 2, FR + 16, 2, 208, TMP + 32), "kvp"))
        add(max(OSTEP, 10 - S2D - 2), "post", pre_ha)
        add(OSTEP + 2, "post", own_signal)
    R = dict(ws=S_WS, x=S_X, out=S_FMT, c=S_G, rho=S_RHO, w=S_WAVE, lane=V_LANE, vA=3, vB=4, vL=5, vX=8, vR=10,
             acc=128, aring=256 - 36 * (S2D + 1), slot0=1, sA=24, sB=S2_SB, sT=S_T + 4, res=96, tmp=112,
             stamp0=3, sgroup="s2", rot=S_ROT, sQ=S2_SQ)
    S = s2c.S2(R, segs, D=S2D, ldflags=S2FLAGS, hooks=hooks)
    S.fill = fill
    return S

def s2_ids(st, typ):
    st(f"s_lshl_b32 s{S_RHO}, s{S_R}, 1")
    if typ == "B": st(f"s_add_u32 s{S_RHO}, s{S_RHO}, 1")
    st(f"s_and_b32 s{S_ROT}, s{S_RHO}, 7")
    st(f"s_and_b32 s{S_T}, s{S_G}, 3")
    st(f"s_lshl_b32 s{S_T}, s{S_T}, 1")
    st(f"s_add_u32 s{S_ROT}, s{S_ROT}, s{S_T}")
    if not S2ROT: st(f"s_mov_b32 s{S_ROT}, 0")

def s2_part(st, L, typ, S=None, issued=0):
    stamp(st, 1, "s2")
    srd(st, S_FMT, P_OUT, OUT_BYTES)
    flag_regs(106, 108)
    if S is None:
        S = s2_make(L, typ)
        s2_ids(st, typ)
        S.setup(st)
    S.run(st, issued, S.fill, KBUDGET if typ == "A" else OBUDGET)
    flag_regs(TMP + 28, TMP + 4)

def gen_k1e(name="proj_kernel"):
    st = Stream()
    L = name
    setup_common(st, L)
    st("s_cmp_ge_u32 s2, 128")
    st(f"s_cbranch_scc1 {L}_B")
    s1_type(st, L + "_a", "A")
    st(f"s_branch {L}_end")
    st.label(f"{L}_B")
    s1_type(st, L + "_b", "B")
    st.label(f"{L}_end")
    stamp_flush(st, 0, S_WS, S_WAVE, 7)
    st.label(f"{L}_exit")
    st("s_endpgm")
    txt, npad = kernel_text(name, st)
    print("k1e: hazard pad states", npad)
    return txt, descriptor(name, 512, 256), dict(grid=256, block=256, lds=K1_LDS)
```

```python
from common import *

RED_BYTES = 4 * 15 * 1024

class S2:
    def __init__(self, R, segs, D=3, ldflags="", hooks=None):
        self.R = R; self.segs = segs; self.D = D; self.ld = ldflags; self.hooks = hooks or {}
        self.steps = [(k, li) for k, (b, nq, half) in enumerate(segs) for li in range(nq)]
        self.n = len(self.steps); self.NS = D + 1
    def slot(self, i): return self.R["aring"] + 36 * ((i + self.R.get("slot0", 0)) % self.NS)
    def setup(self, st):
        R = self.R; w = R["w"]; sT = R["sT"]; sA = R["sA"]; sB = R["sB"]; vL = R["vL"]
        for j in range(4):
            st(f"s_add_u32 s{sT}, s{w}, {j}")
            st(f"s_and_b32 s{sT}, s{sT}, 3")
            st(f"s_lshl_b32 s{sT+1}, s{R['rho']}, 2")
            st(f"s_add_u32 s{sT}, s{sT}, s{sT+1}")
            st(f"s_mul_i32 s{sT}, s{sT}, {NKB*1024}")
            st(f"s_add_u32 s{sA+j}, s{sT}, {HF_OFF}")
        st(f"s_mul_i32 s{sB}, s{R['c']}, {NKB*5120}")
        st(f"s_add_u32 s{sB}, s{sB}, {W2F_OFF}")
        st(f"s_add_u32 s{sB+1}, s{sB}, 4096")
        st(f"v_lshlrev_b32 v{vL}, 4, v{R['lane']}")
        st(f"s_lshl_b32 s{sT}, s{w}, 10")
        st(f"v_add_u32 v{vL+1}, s{sT}, v{vL}")
        st(f"s_mul_i32 s{sT}, s{w}, 5120")
        st(f"v_add_u32 v{vL+2}, s{sT}, v{vL}")
        st(f"s_cmp_ge_u32 s{w}, 2")
        st(f"s_cselect_b32 s{sT+2}, 0x40000000, 0")
    def addr(self, g, i, vA, vB):
        R = self.R; sT = R["sT"]; sQ = R["sQ"]; rot = R["rot"]; vL = R["vL"]
        k, li = self.steps[i]
        base, nq, half = self.segs[k]
        if li == 0:
            g(f"s_mul_i32 s{sT}, s{rot}, {-(-65536 // nq)}")
            g(f"s_lshr_b32 s{sT}, s{sT}, 16")
            g(f"s_mul_i32 s{sT}, s{sT}, {nq}")
            g(f"s_sub_u32 s{sQ}, s{rot}, s{sT}")
        else:
            g(f"s_add_u32 s{sQ}, s{sQ}, 1")
            g(f"s_cmp_eq_u32 s{sQ}, {nq}")
            g(f"s_cselect_b32 s{sQ}, 0, s{sQ}")
        g(f"s_lshl_b32 s{sT}, s{sQ}, 2")
        g(f"s_add_u32 s{sT}, s{sT}, {base}")
        g(f"s_mul_i32 s{sT+1}, s{sT}, 5120")
        g(f"s_lshl_b32 s{sT}, s{sT}, 10")
        if half:
            g(f"s_cmp_eq_u32 s{sQ}, {nq-1}")
            g(f"s_cselect_b32 s{sQ+1}, s{sT+2}, 0")
            g(f"s_add_u32 s{sT}, s{sT}, s{sQ+1}")
            g(f"s_add_u32 s{sT+1}, s{sT+1}, s{sQ+1}")
        g(f"v_add_u32 v{vA}, s{sT}, v{vL+1}")
        g(f"v_add_u32 v{vB}, s{sT+1}, v{vL+2}")
    def loadsB(self, g, i, vB):
        R = self.R; sws = R["ws"]; sB = R["sB"]; r = self.slot(i)
        for jj in range(5):
            sb = sB if jj < 4 else sB + 1
            g(f"buffer_load_dwordx4 a[{r+16+4*jj}:{r+16+4*jj+3}], v{vB}, s[{sws}:{sws+3}], s{sb} offen offset:{1024*(jj&3)}{self.ld}", tag=f"S{i}")
    def loadsA(self, g, i, vA):
        R = self.R; sws = R["ws"]; sA = R["sA"]; r = self.slot(i)
        for j in range(4):
            g(f"buffer_load_dwordx4 a[{r+4*j}:{r+4*j+3}], v{vA}, s[{sws}:{sws+3}], s{sA+j} offen{self.ld}", tag=f"S{i}")
    def group(self, i):
        g = Stream()
        if i >= self.n: return g
        self.addr(g, i, self.R["vA"], self.R["vB"])
        self.loadsB(g, i, self.R["vB"])
        self.loadsA(g, i, self.R["vA"])
        return g
    def late_setup(self, st):
        R = self.R; lane = R["lane"]; w = R["w"]; sT = R["sT"]; vX = R["vX"]; vR = R["vR"]; vL = R["vL"]
        RES = R["res"]; RED = R.get("red", 0); sx = R["x"]
        st(f"v_and_b32 v{vX}, 15, v{lane}")
        st(f"s_lshl_b32 s{sT}, s{R['rho']}, 6")
        st(f"s_lshl_b32 s{sT+1}, s{w}, 4")
        st(f"s_add_u32 s{sT}, s{sT}, s{sT+1}")
        st(f"v_add_u32 v{vX}, s{sT}, v{vX}")
        st(f"v_mul_u32_u24 v{vX}, 1280, v{vX}")
        st(f"v_lshrrev_b32 v{vX+1}, 4, v{lane}")
        st(f"v_lshl_add_u32 v{vX}, v{vX+1}, 3, v{vX}")
        st(f"s_mul_i32 s{sT}, s{R['c']}, 160")
        st(f"v_add_u32 v{vX}, s{sT}, v{vX}")
        for j in range(1, 4):
            st(f"s_add_u32 s{sT}, s{w}, {j}")
            st(f"s_and_b32 s{sT}, s{sT}, 3")
            st(f"s_mul_i32 s{sT}, s{sT}, 15360")
            st(f"s_add_u32 s{sT}, s{sT}, {RED + (j-1)*5120}")
            st(f"v_add_u32 v{vR+j-1}, s{sT}, v{vL}")
        st(f"s_mul_i32 s{sT}, s{w}, 15360")
        st(f"s_add_u32 s{sT}, s{sT}, {RED}")
        st(f"v_add_u32 v{vR+3}, s{sT}, v{vL}")
    def res_ops(self):
        R = self.R; g = Stream()
        for jj in range(5):
            g(f"buffer_load_dwordx2 v[{R['res']+2*jj}:{R['res']+2*jj+1}], v{R['vX']}, s[{R['x']}:{R['x']+3}], 0 offen offset:{32*jj}", tag="res")
        return g.ops
    def run(self, st, issued=0, fill=None, budget=5):
        fill = fill or {}
        fq = []
        self._run(st, issued, fill, fq, budget)

    def _run(self, st, issued, fill, fq, budget):
        R = self.R; D = self.D; n = self.n; hooks = self.hooks
        ACC = R["acc"]; vR = R["vR"]; vX = R["vX"]; RES = R["res"]; so = R["out"]
        for i in range(issued, D):
            if i in hooks and hooks[i].get("pre"): hooks[i]["pre"](st)
            st.extend(self.group(i))
            if ("p", i) in hooks: hooks[("p", i)](st)
        self.late_setup(st)
        if "after_prologue" in hooks: hooks["after_prologue"](st)
        stamp(st, R.get("stamp0", 1), R.get("sgroup", "main"))
        last = n - 1
        for i in range(n):
            if i in (5, 9, 10, 14): stamp(st, {5: 2, 9: 4, 10: 5, 14: 6}[i], "s2b")
            if i == 0: stamp(st, 1, "s2b")
            if i + D in hooks and hooks[i + D].get("pre"): hooks[i + D]["pre"](st)
            if i == 5: stamp(st, 3, "s2b")
            gq = self.group(i + D).ops
            if i == n - D - 1 + 1: gq = gq + self.res_ops()
            if i in fill: fq.extend(fill[i])
            st.wait(vm=f"S{i}")
            r = self.slot(i)
            m = 0
            order = (0, 1, 2, 3) if i < last else (1, 2, 3, 0)
            wq = []
            for j in order:
                for jj in range(5):
                    acc = ACC + 20 * j + 4 * jj
                    cin = "0" if i == 0 else f"v[{acc}:{acc+3}]"
                    st(f"v_mfma_f32_16x16x32_bf16 v[{acc}:{acc+3}], a[{r+16+4*jj}:{r+16+4*jj+3}], a[{r+4*j}:{r+4*j+3}], {cin}")
                    m += 1
                    if m % 2 == 0:
                        while gq:
                            op = gq.pop(0); st.ops.append(op)
                            if op.kind == "vmem": break
                    b = budget
                    while fq and b > 0:
                        grp = fq.pop(0); st.ops.extend(grp); b -= max(1, sum(1 for o in grp if o.kind in ("valu", "ds", "vmem", "mfma")))
                    if i == last and wq and m % 1 == 0 and len(wq) > 0 and m > 5 + 2:
                        st.ops.append(wq.pop(0))
                if i == last and j != 0:
                    for jj in range(5):
                        acc = ACC + 20 * j + 4 * jj
                        s = Stream(); s(f"ds_write_b128 v{vR+j-1}, v[{acc}:{acc+3}] offset:{1024*jj}", tag="rw")
                        wq.extend(s.ops)
            st.ops.extend(gq)
            if i == last:
                assert not fq
                st.ops.extend(wq)
            if i in hooks and hooks[i].get("post"): hooks[i]["post"](st)
        stamp(st, R.get("stamp0", 1) + 1, R.get("sgroup", "main"))
        st.wait(lg="rw")
        st("s_barrier")
        T = ACC + 20
        for jj in range(5):
            for js in range(3):
                k = js * 5 + jj
                st(f"ds_read_b128 v[{T+4*k}:{T+4*k+3}], v{vR+3} offset:{1024*k}", tag=f"rr{k}")
        st.wait(vm="res")
        T2 = R["tmp"]
        for jj in range(5):
            acc = ACC + 4 * jj; r = RES + 2 * jj
            st(f"v_lshlrev_b32 v{T2}, 16, v{r}")
            st(f"v_and_b32 v{T2+1}, 0xffff0000, v{r}")
            st(f"v_lshlrev_b32 v{T2+2}, 16, v{r+1}")
            st(f"v_and_b32 v{T2+3}, 0xffff0000, v{r+1}")
            for i in range(4):
                st(f"v_add_f32 v{acc+i}, v{acc+i}, v{T2+i}")
            for js in range(3):
                k = js * 5 + jj
                st.wait(lg=f"rr{k}")
                for i in range(4):
                    st(f"v_add_f32 v{acc+i}, v{acc+i}, v{T+4*k+i}")
            st(f"v_cvt_pk_bf16_f32 v{r}, v{acc}, v{acc+1}")
            st(f"v_cvt_pk_bf16_f32 v{r+1}, v{acc+2}, v{acc+3}")
            st(f"buffer_store_dwordx2 v[{r}:{r+1}], v{vX}, s[{so}:{so+3}], 0 offen offset:{32*jj}")
```

```python
import sys, os
import common
if len(sys.argv) > 2 and sys.argv[2] == 'prof':
    common.PROF = True
    if len(sys.argv) > 3: common.STAMP_SET = sys.argv[3]
if os.environ.get('HWID'): common.HWID = True
from build import *
import k1e
k1e.FUSED = True
k1e.ST_FLAGS = " sc1"
if os.environ.get('WPREF') == '0': k1e.WPREF = False
if os.environ.get('TOUCH') == '0': k1e.TOUCH = False
if os.environ.get('FMT_STAGE'): k1e.FMT_STAGE = int(os.environ['FMT_STAGE'])
if os.environ.get('OSTEP'): k1e.OSTEP = int(os.environ['OSTEP'])
if os.environ.get('S2D'): k1e.S2D = int(os.environ['S2D'])
if 'S2FLAGS' in os.environ: k1e.S2FLAGS = os.environ['S2FLAGS']
if os.environ.get('S2ROT') == '0': k1e.S2ROT = False
if os.environ.get('EARLY') == '0': k1e.EARLY = False
if os.environ.get('FMTX'): k1e.FMTX = os.environ['FMTX']
if os.environ.get('FT'): k1e.FT_EVERY, k1e.FT_T0, k1e.FMT_STAGE = [int(x) for x in os.environ['FT'].split(',')]
if os.environ.get('PFJ'): k1e.PFJ = int(os.environ['PFJ'])
if os.environ.get('HB'): k1e.HB_SLOT, k1e.HB_STAGE, k1e.HB_FILL_END, k1e.HB_PER = [int(x) for x in os.environ['HB'].split(',')]
if os.environ.get('HIDE') == '0': k1e.HIDE = False
for k in ('KSTEP', 'KBUDGET', 'OBUDGET'):
    if os.environ.get(k): setattr(k1e, k, int(os.environ[k]))
if os.environ.get('CODEPF') == '0': k1e.CODEPF = False
for k in ('NOSTATS', 'GLATE', 'NOFMT', 'NONORM', 'SAMEW', 'W2PF'):
    if os.environ.get(k) == '1': setattr(k1e, k, True)
if os.environ.get('VME'): k1e.VME_1, k1e.VME_A2, k1e.VME_B2 = [int(x) for x in os.environ['VME'].split(',')]
name = common.NAME + "_kernel"
t, d, l = k1e.gen_k1e(name)
hdr = open("cdna_kernels/" + common.NAME + ".s.ref").read().split("; Override launch")[0]
out = hdr + f"; @launch grid=({l['grid']},1,1) block=({l['block']},1,1) lds={l['lds']}\n"
out += '.amdgcn_target "amdgcn-amd-amdhsa--gfx950"\n.text\n' + t + '.section .rodata,"a"\n' + d
open(sys.argv[1], "w").write(out)
```

```python
from common import *
import s2b, s2c

SLOT = 20480
NSLOT, DIST, LOOK = 6, 4, 4
NFR = LOOK + 2
KVP = NSLOT * SLOT
KVP_PITCH = 336
K1_LDS = 163840
FT = KVP
LOG2E = 0x3fb8aa3b
EPS6 = 0x358637bd

for c in range(320): assert (c * 3277) >> 16 == c // 20
for c in range(192): assert (c * 5462) >> 16 == c // 12
for c in range(512): assert (c * 625) >> 16 == c // 105
for c in range(105): assert (c * 13108) >> 16 == c // 5
for c in range(1024): assert (c * 5669) >> 22 == c // 740

V_LANE = 2
V_D1 = 3
V_D2 = 8
V_H = 11
V_RS, V_C = 12, 13
V_T1 = 14
FR = 16
TMP = 40
V_T2 = 88
V_KVA = 90
V_Z = 91
V_W = 91
V_FLAG = 95
V_FOFF = 1
X = 96
ACC1 = 0
ACC2 = 80
S_X = 4; S_FMT = 8
S_WAVE = 14; S_G = 15; S_R = 16; S_XB = 17; S_M1 = 18; S_M2 = 19
S_WS = 20; S_W1 = 24; S_W2 = 28; S_DBG = 32
S_K1 = 36; S_K2 = 37; S_H = 38; S_XM = 39; S_T = 40
S_O = 50
S_EPS = 56; S_L2E = 57; S_KV = 58; S_HALF = 60
KA = 64
P_X, P_WQKV, P_WO, P_W1, P_W2, P_OUT, P_DBG = 64, 66, 68, 72, 74, 76, 78
P_WS = 12
SFD = (100, 101, 70, 71)
S_FTM = 59
S_PF = 44
S_GB = 55
V_FMT = TMP + 36
ST_FLAGS = ""

def one(txt, **kw):
    s = Stream(); s(txt, **kw); return s.ops

def relu_pack_store(acc, P, T, sbase, imm):
    G = []
    for p in range(8):
        t = T + 2 * (p & 1)
        G.append(one(f"v_accvgpr_read_b32 v{t}, a{acc+2*p}"))
        G.append(one(f"v_accvgpr_read_b32 v{t+1}, a{acc+2*p+1}"))
        G.append(one(f"v_cvt_pk_bf16_f32 v{P+p}, v{t}, v{t+1}"))
        G.append(one(f"v_pk_max_i16 v{P+p}, v{P+p}, 0"))
    for u in range(2):
        G.append(one(f"buffer_store_dwordx4 v[{P+4*u}:{P+4*u+3}], v{V_H}, s[{S_WS}:{S_WS+3}], s{sbase} offen offset:{imm+512*u}{ST_FLAGS}", tag="hst"))
    return G

def phi_groups(regs, tbase, ntmp=8):
    G = []
    n = len(regs)
    for i0 in range(0, n, ntmp):
        blk = regs[i0:i0+ntmp]
        for k, r in enumerate(blk): G.append(one(f"v_min_f32 v{tbase+k}, 0, v{r}"))
        for k, r in enumerate(blk): G.append(one(f"v_mul_f32 v{tbase+k}, s{S_L2E}, v{tbase+k}"))
        for k, r in enumerate(blk): G.append(one(f"v_exp_f32 v{tbase+k}, v{tbase+k}"))
        for k, r in enumerate(blk): G.append(one(f"v_max_f32 v{r}, 0, v{r}"))
        for k, r in enumerate(blk): G.append(one(f"v_add_f32 v{r}, s{S_EPS}, v{r}"))
        for k, r in enumerate(blk): G.append(one(f"v_add_f32 v{r}, v{r}, v{tbase+k}"))
    return G

def norm_groups(t):
    G = []
    for pr in range(2):
        r0, r1 = X + 4 * t + 2 * pr, X + 4 * t + 2 * pr + 1
        a = TMP
        G.append(one(f"v_lshlrev_b32 v{a}, 16, v{r0}"))
        G.append(one(f"v_and_b32 v{a+1}, 0xffff0000, v{r0}"))
        G.append(one(f"v_lshlrev_b32 v{a+2}, 16, v{r1}"))
        G.append(one(f"v_and_b32 v{a+3}, 0xffff0000, v{r1}"))
        for k in range(4):
            G.append(one(f"v_fma_f32 v{a+k}, v{a+k}, v{V_RS}, v{V_C}"))
        G.append(one(f"v_cvt_pk_bf16_f32 v{r0}, v{a}, v{a+1}"))
        G.append(one(f"v_cvt_pk_bf16_f32 v{r1}, v{a+2}, v{a+3}"))
    return G

def flush(st, groups):
    for g in groups: st.ops.extend(g)

def head(x): return x // 20

class Passes:
    def __init__(self, st, typ):
        self.st = st; self.typ = typ
        self.nb2 = 2 if typ == "A" else 3
        self.items = [(1, t, b) for t in range(40) for b in range(5)] + [(2, t, b) for t in range(40) for b in range(self.nb2)]
        self.pend = []; self.gq = []
        self.barriered = set()
        self.after_barrier = {}
        self.before_barrier = {}
        self.since = 99
        self.dense = False
        self.since_x = 99
        self.extra = []
        self.inject = {}
        self.injq = []
    def group(self, s):
        g = Stream()
        if s >= 20: return g
        slot = s % NSLOT
        if s < 10:
            g(f"s_add_u32 s{S_GB}, s{S_K1}, {(0 if SAMEW else s) * 64 * (3840 if self.typ == 'A' else 3456)}")
            for i in range(5):
                g(f"s_add_u32 m0, s{S_M1}, {slot*SLOT + 1024*i}")
                g(f"buffer_load_dwordx4 v{V_D1+i}, s[{S_W1}:{S_W1+3}], s{S_GB} offen lds", tag=f"G{s}")
        else:
            g(f"s_add_u32 s{S_GB}, s{S_K2}, {(s-10) * 64 * (3456 if self.typ == 'A' else 3840)}")
            for i in range(3):
                g(f"s_add_u32 m0, s{S_M2}, {slot*SLOT + 1024*i}")
                g(f"buffer_load_dwordx4 v{V_D2+i}, s[{S_W2}:{S_W2+3}], s{S_GB} offen lds", tag=f"G{s}")
        return g
    def frag(self, i): return FR + 4 * (i % NFR)
    def read(self, i):
        st = self.st
        p, t, b = self.items[i]
        s = (0 if p == 1 else 10) + t // 4
        slot = s % NSLOT
        pitch = 320 if p == 1 else 192
        off = slot * SLOT + (t & 3) * 16 * pitch + 64 * b
        base = V_T1 if p == 1 else V_T2
        if off >= 3 * SLOT: base += 1; off -= 3 * SLOT
        r = self.frag(i)
        if t % 4 == 0 and b == 0 and s not in self.barriered:
            self.barriered.add(s)
            assert s not in self.pend and not any(o.tag == f"G{s}" for o in self.gq), f"stage {s} not issued"
            st.wait(vm=f"G{s}")
            if s in self.before_barrier: self.before_barrier[s](st)
            st("s_barrier")
            if s in (1, 3, 5, 7, 9): stamp(st, {1: 1, 3: 2, 5: 3, 7: 4, 9: 5}[s], "p1")
            if s == 0:
                if GLATE: self.pend.append(2)
                self.pend.append(3)
            self.pend.append(s + DIST)
            if s in self.after_barrier: self.after_barrier[s](st)
        st(f"ds_read_b64_tr_b16 v[{r}:{r+1}], v{base} offset:{off}", tag=f"F{i}")
        st(f"ds_read_b64_tr_b16 v[{r+2}:{r+3}], v{base} offset:{off + 4*pitch}", tag=f"F{i}")
    def start(self, i0):
        for i in range(i0, i0 + LOOK): self.read(i)
    def run(self, lo, hi, fillers=None, per_slot=2, lookahead_to=None, vm_takes_slot=True):
        st = self.st
        fillers = fillers if fillers is not None else []
        lim = lookahead_to if lookahead_to is not None else len(self.items)
        for i in range(lo, hi):
            p, t, b = self.items[i]
            while self.pend:
                self.gq.extend(self.group(self.pend.pop(0)).ops)
            if i in self.inject:
                assert not any(o.tag == "ft" for o in self.extra + self.gq), "format tile not issued"
                self.injq.extend(self.inject.pop(i))
            st.wait(lg=f"F{i}")
            r = self.frag(i)
            acc = (ACC1 if p == 1 else ACC2) + 16 * b
            cin = "0" if t == 0 else f"a[{acc}:{acc+15}]"
            W = f"v[{r}:{r+3}]"; Xr = f"v[{X+4*t}:{X+4*t+3}]"
            if p == 1 and self.typ == "A":
                st(f"v_mfma_f32_32x32x16_bf16 a[{acc}:{acc+15}], {Xr}, {W}, {cin}")
            else:
                st(f"v_mfma_f32_32x32x16_bf16 a[{acc}:{acc+15}], {W}, {Xr}, {cin}")
            used = 0
            every = 4 if p == 1 else (VME_A2 if self.typ == "A" else VME_B2)
            if p == 1: every = VME_1 if (i >= 40 or not GLATE) else 2
            if self.dense: every = 1
            self.since += 1
            self.since_x += 1
            q = None
            if self.gq and self.since >= every:
                q = self.gq; self.since = 0
            elif self.extra and self.since_x >= (1 if self.dense else (FT_EVERY if p == 1 else max(every, 2))) and (self.since > 0 or not self.gq):
                q = self.extra; self.since_x = 0
            while q:
                op = q.pop(0); st.ops.append(op)
                if op.kind == "vmem":
                    used = 1 if vm_takes_slot else 0
                    break
            if i + LOOK < lim: self.read(i + LOOK)
            if self.injq:
                isst = any(o.kind == "vmem" for o in self.injq[0])
                if not isst or (i % 4 == 2 and used == 0 and self.since > 0):
                    st.ops.extend(self.injq.pop(0))
            for _ in range(per_slot - used):
                if fillers: st.ops.extend(fillers.pop(0))
        return fillers
    def drain_groups(self, keep_extra=False):
        while self.pend:
            self.gq.extend(self.group(self.pend.pop(0)).ops)
        if self.extra and not keep_extra:
            self.gq.extend(self.extra); self.extra = []
        self.st.ops.extend(self.gq); self.gq = []

V_FTGT = TMP + 28
KVREGS = (110, 111)
V_SIG = TMP + 4
def flag_regs(ftgt, sig):
    global V_FTGT, V_SIG
    V_FTGT = ftgt; V_SIG = sig
def _flag_addr(st, spec, VF):
    lines, stride, lanes, extra = spec
    for ln in lines: st(ln)
    if lanes == 1:
        st(f"v_mov_b32 v{VF[1]}, s{S_T}")
    else:
        st(f"v_mul_u32_u24 v{VF[1]}, {stride}, v{V_LANE}")
        st(f"v_add_u32 v{VF[1]}, s{S_T}, v{VF[1]}")
        if extra:
            for ln in extra: st(ln)
            st(f"v_mov_b32 v{V_FTGT}, s{S_T+1}")
            st(f"v_cmp_eq_u32 vcc, {lanes-1}, v{V_LANE}")
            st(f"v_cndmask_b32 v{VF[1]}, v{VF[1]}, v{V_FTGT}, vcc")

def preload(st, L, name, spec, srd, regs=None):
    VF = regs or (V_FLAG, V_FOFF)
    st(f"s_cmp_lg_u32 s{S_WAVE}, 0")
    st(f"s_cbranch_scc1 {L}_{name}_pre")
    _flag_addr(st, spec, VF)
    lanes = spec[2]
    st(f"s_mov_b64 exec, {(1 << lanes) - 1}")
    st(f"buffer_load_dword v{VF[0]}, v{VF[1]}, s[{srd}:{srd+3}], 0 offen sc0 sc1", note="cond")
    st("s_mov_b64 exec, -1")
    st.label(f"{L}_{name}_pre")
    st.mark(name)

def poll(st, L, name, spec, targets, srd, preloaded=None, regs=None):
    VF = regs or (V_FLAG, V_FOFF)
    lanes = spec[2]
    mask = (1 << lanes) - 1
    st(f"s_cmp_lg_u32 s{S_WAVE}, 0")
    st(f"s_cbranch_scc1 {L}_{name}_ok")
    if isinstance(targets, tuple):
        st(f"v_mov_b32 v{V_FTGT}, {targets[0]}")
        st(f"v_mov_b32 v{V_FTGT+1}, {targets[1]}")
        st(f"v_cmp_eq_u32 vcc, {lanes-1}, v{V_LANE}")
        st(f"v_cndmask_b32 v{V_FTGT}, v{V_FTGT}, v{V_FTGT+1}, vcc")
    else:
        st(f"v_mov_b32 v{V_FTGT}, {targets}")
    st(f"s_mov_b64 exec, {mask}")
    if preloaded:
        st.waitmark(preloaded)
        st(f"v_cmp_ge_u32 vcc, v{VF[0]}, v{V_FTGT}")
        st(f"s_cmp_eq_u64 vcc, {mask}")
        st(f"s_cbranch_scc1 {L}_{name}_done")
    st(f"s_mov_b32 s{S_T+2}, 0")
    import common
    if common.HWID:
        k = {"init": 0, "kv": 1, "start": 2, "ha": 3, "ob": 4, "w2c": 5, "hb": 6}[name]
        st(f"s_or_b32 s3, s3, {1 << k}")
    st.label(f"{L}_{name}_spin")
    st(f"buffer_load_dword v{VF[0]}, v{VF[1]}, s[{srd}:{srd+3}], 0 offen sc0 sc1", note="cond")
    st("s_waitcnt vmcnt(0)", note="cond")
    st(f"v_cmp_ge_u32 vcc, v{VF[0]}, v{V_FTGT}")
    st(f"s_add_u32 s{S_T+2}, s{S_T+2}, 1")
    st(f"s_cmp_ge_u32 s{S_T+2}, 0x40000")
    st(f"s_cbranch_scc1 {L}_{name}_done")
    st(f"s_cmp_eq_u64 vcc, {mask}")
    st(f"s_cbranch_scc0 {L}_{name}_spin")
    st.label(f"{L}_{name}_done")
    st("s_mov_b64 exec, -1")
    st.label(f"{L}_{name}_ok")

def flag_off(line_base, sreg):
    return [f"s_lshl_b32 s{S_T}, s{sreg}, 7", f"s_add_u32 s{S_T}, s{S_T}, {FL_OFF + 128*line_base}"]
def flag_spec(line_base, sreg): return (flag_off(line_base, sreg), 0, 1, None)

INIT_SPEC = ([f"s_and_b32 s{S_T}, s2, 3", f"s_lshl_b32 s{S_T}, s{S_T}, 6"], 0, 1, None)
W2C_SPEC = ([f"s_mov_b32 s{S_T}, {FL_OFF + 128*FL_W2}"], 128, 8, None)
START_SPEC = ([f"s_mov_b32 s{S_T}, {FL_OFF + 128*FL_W2}"], 128, 9,
              [f"s_lshl_b32 s{S_T+1}, s{S_R}, 7", f"s_add_u32 s{S_T+1}, s{S_T+1}, {FL_OFF + 128*FL_HB}"])

def signal(st, L, name, off_lines, srd, lanes=1, lane_stride=0):
    st(f"s_cmp_lg_u32 s{S_WAVE}, 0")
    st(f"s_cbranch_scc1 {L}_{name}_sig")
    st(f"v_mov_b32 v{V_SIG}, 1")
    for ln in off_lines: st(ln)
    if lane_stride:
        st(f"v_mul_u32_u24 v{V_SIG+1}, {lane_stride}, v{V_LANE}")
        st(f"v_add_u32 v{V_SIG+1}, s{S_T}, v{V_SIG+1}")
    else:
        st(f"v_mov_b32 v{V_SIG+1}, s{S_T}")
    st(f"s_mov_b64 exec, {(1 << lanes) - 1}")
    st(f"buffer_atomic_add v{V_SIG}, v{V_SIG+1}, s[{srd}:{srd+3}], 0 offen", note="cond")
    st("s_mov_b64 exec, -1")
    st.label(f"{L}_{name}_sig")

class Groups:
    def __init__(self): self.G = []
    def one(self, txt, **kw): self.G.append(one(txt, **kw))
    def stream(self, fn):
        s = Stream(); fn(s); self.G.append(s.ops)
    def ext(self, groups): self.G.extend(groups)

def kv_groups_A(L):
    g = Groups()
    PK = [TMP, TMP + 8, TMP + 16]; VB = [TMP + 24, TMP + 32, TMP + 40]
    VAL = FR; T = FR + 16
    for vb, b in ((0, 2), (1, 3), (2, 4)):
        a = ACC1 + 16 * b
        for i in range(16): g.one(f"v_accvgpr_read_b32 v{VAL+i}, a{a+i}")
        for p in range(8): g.one(f"v_cvt_pk_bf16_f32 v{VB[vb]+p}, v{VAL+2*p}, v{VAL+2*p+1}")
    g.one(f"v_mov_b32 v{T}, 0x3f803f80")
    for p in range(8): g.one(f"v_cndmask_b32 v{VB[0]+p}, v{VB[0]+p}, v{T}, s[{S_HALF+2}:{S_HALF+3}]")
    for kb in range(3):
        a = ACC1 + 16 * kb
        for i in range(16): g.one(f"v_accvgpr_read_b32 v{VAL+i}, a{a+i}")
        g.ext(phi_groups([VAL + i for i in range(16)], T, 8))
        for p in range(8): g.one(f"v_cvt_pk_bf16_f32 v{PK[kb]+p}, v{VAL+2*p}, v{VAL+2*p+1}")
    tiles = [(0, 0), (0, 1), (1, 1), (1, 2), (2, 2), (1, 0), (2, 0)]
    DT = [16 * i for i in range(7)]
    for tau in range(2):
        for n, (kd, ve) in enumerate(tiles):
            d = DT[n]
            cin = "0" if tau == 0 else f"a[{d}:{d+15}]"
            g.one(f"v_mfma_f32_32x32x16_bf16 a[{d}:{d+15}], v[{PK[kd]+4*tau}:{PK[kd]+4*tau+3}], v[{VB[ve]+4*tau}:{VB[ve]+4*tau+3}], {cin}")
    eoff = {0: -16, 1: 16, 2: 48}
    def masked(mask, txt):
        def f(s):
            s(f"s_mov_b32 exec_lo, 0x{mask & 0xffffffff:x}")
            s(f"s_mov_b32 exec_hi, 0x{mask >> 32:x}")
            s(txt, tag="kvw")
            s("s_mov_b64 exec, -1")
        g.stream(f)
    for n, (kd, ve) in enumerate(tiles):
        for q in range(4):
            r = DT[n] + 4 * q
            if n < 5:
                mask = 0
                for l in range(64):
                    c, h = l & 31, l >> 5
                    d = 32 * kd + 8 * q + 4 * h
                    if d >= 80 or (ve == 0 and c < 16): continue
                    e = eoff[ve] + c
                    if e < 80 and head(e) == head(d): mask |= 1 << l
                if mask: masked(mask, f"ds_write_b128 v{V_KVA}, a[{r}:{r+3}] offset:{80*(eoff[ve]+16) + 128*kd + 32*q}")
            if ve == 0:
                byhead = {}
                for h in range(2):
                    d = 32 * kd + 8 * q + 4 * h
                    if d < 80: byhead[head(d)] = byhead.get(head(d), 0) | (1 << (32 * h))
                for hd, mask in byhead.items():
                    masked(mask, f"ds_write_b128 v{V_Z}, a[{r}:{r+3}] offset:{1600*hd + 1600 + 128*kd + 32*q}")
    def bar(s):
        s.wait(lg="kvw")
        s("s_barrier")
    g.stream(bar)
    A0 = TMP + 4
    g.one(f"v_lshlrev_b32 v{A0}, 2, v0")
    g.one(f"v_add_u32 v{A0+1}, {KVP}, v{A0}")
    RB = FR
    for i in range(6):
        for wv in range(4):
            g.one(f"ds_read_b32 v{RB+4*i+wv}, v{A0+1} offset:{7168*wv + 1024*i}", tag=f"kr{i}")
    for wv in range(4):
        g.one(f"ds_read_b32 v{TMP+8+wv}, v{A0+1} offset:{7168*wv + 1024*6}", tag="kr6")
    g.one(f"s_add_u32 s{S_T+2}, s{S_KV}, 4096")
    for i in range(7):
        r = RB + 4 * i if i < 6 else TMP + 8
        def red(s, i=i, r=r):
            s.wait(lg=f"kr{i}")
            s(f"v_add_f32 v{r}, v{r}, v{r+1}")
            s(f"v_add_f32 v{r+2}, v{r+2}, v{r+3}")
            s(f"v_add_f32 v{r}, v{r}, v{r+2}")
            sreg = S_KV if i < 4 else S_T + 2
            s(f"buffer_atomic_add_f32 v{r}, v{A0}, s[{S_WS}:{S_WS+3}], s{sreg} offen offset:{1024*(i&3)}", tag="kvat")
        g.stream(red)
    return g.G

def kv_epilogue_A(st, L):
    G = kv_groups_A(L)
    flush(st, G)

def q_groups_B():
    g = Groups()
    PQ = TMP; VAL = FR; T = FR + 16
    for b in (2, 0, 1):
        a = ACC2 + 16 * b
        n = 16 if b < 2 else 8
        for i in range(n): g.one(f"v_accvgpr_read_b32 v{VAL+i}, a{a+i}")
        g.ext(phi_groups([VAL + i for i in range(n)], T, 8))
        for p in range(n // 2): g.one(f"v_cvt_pk_bf16_f32 v{PQ+8*b+p}, v{VAL+2*p}, v{VAL+2*p+1}")
    for i in range(4): g.one(f"v_mov_b32 v{VAL+i}, 0")
    g.one(f"v_lshlrev_b32 v{T}, 4, v0")
    g.one(f"v_add_u32 v{T}, {KVP}, v{T}")
    for i in range(8): g.one(f"ds_write_b128 v{T}, v[{VAL}:{VAL+3}] offset:{4096*i}", tag="z")
    return g.G

def q_epilogue_B(st, L):
    flush(st, q_groups_B())

def o_groups_B(L, regs, preloaded):
    g = Groups()
    PQ = TMP
    T, RT, NRT, AF, NAF, DT, RD = regs
    def head_part(st):
        poll(st, L, "kv", flag_spec(FL_KVC, S_G), 16, S_WS, preloaded=preloaded, regs=KVREGS)
        st.wait(lg="z")
        st("s_barrier")
        stamp(st, 5)
        st(f"v_lshlrev_b32 v{T}, 4, v0")
        st(f"s_add_u32 s{S_T+2}, s{S_KV}, 4096")
        st(f"buffer_load_dwordx4 v[{T+4}:{T+7}], v{T}, s[{S_WS}:{S_WS+3}], s{S_KV} offen sc0 sc1", tag="kvl0")
        st(f"buffer_load_dwordx4 v[{T+8}:{T+11}], v{T}, s[{S_WS}:{S_WS+3}], s{S_T+2} offen sc0 sc1", tag="kvl1")
    g.stream(head_part)
    head_groups = g.G; g.G = []
    def stage(st):
        st.wait(vm="kvl0")
        st(f"ds_write_b128 v{V_W}, v[{T+4}:{T+7}]", tag="kvw")
        st(f"ds_write_b128 v{V_W+1}, v[{T+4}:{T+7}]", tag="kvw")
        st.wait(vm="kvl1")
        st(f"ds_write_b128 v{V_W+2}, v[{T+8}:{T+11}]", tag="kvw")
        st(f"ds_write_b128 v{V_W+3}, v[{T+8}:{T+11}]", tag="kvw")
        st.wait(lg="kvw")
        st("s_barrier")
    g.stream(stage)
    frs = [(0, 0), (0, 1), (0, 2), (1, 1), (1, 2), (1, 3), (1, 4), (2, 0), (2, 1), (2, 2), (2, 3), (2, 4)]
    def rd(n):
        E, tp = frs[n]
        r = RT + 8 * (n % NRT)
        off = 32 * E * KVP_PITCH + 64 * tp
        g.one(f"ds_read_b128 v[{r}:{r+3}], v{V_KVA} offset:{off}", tag=f"kf{n}")
        g.one(f"ds_read_b128 v[{r+4}:{r+7}], v{V_KVA} offset:{off+32}", tag=f"kf{n}")
    for n in range(NRT): rd(n)
    first = {0: True, 1: True, 2: True}
    for n, (E, tp) in enumerate(frs):
        r = RT + 8 * (n % NRT); f = AF + 4 * (n % NAF)
        def cv(s, n=n, r=r, f=f):
            s.wait(lg=f"kf{n}")
            for k in range(4): s(f"v_cvt_pk_bf16_f32 v{f+k}, v{r+2*k}, v{r+2*k+1}")
        g.stream(cv)
        if n + NRT < 12: rd(n + NRT)
        q = PQ + 8 * (tp >> 1) + 4 * (tp & 1)
        d = DT + 16 * E
        cin = "0" if first[E] else f"v[{d}:{d+15}]"
        first[E] = False
        g.one(f"v_mfma_f32_32x32x16_bf16 v[{d}:{d+15}], v[{f}:{f+3}], v[{q}:{q+3}], {cin}")
    d2 = DT + 32
    for h in range(4): g.one(f"v_add_f32 v{RD+h}, s{S_EPS}, v{d2+8+h}")
    for h in range(4): g.one(f"v_rcp_f32 v{RD+h}, v{RD+h}")
    g.one(f"v_cndmask_b32 v{RD+4}, v{RD+0}, v{RD+1}, s[{S_HALF}:{S_HALF+1}]")
    g.one(f"v_cndmask_b32 v{RD+5}, v{RD+2}, v{RD+3}, s[{S_HALF}:{S_HALF+1}]")
    sel = {0: RD, 1: RD, 2: RD + 4, 3: RD + 1, 4: RD + 1, 5: RD + 2, 6: RD + 2, 7: RD + 5, 8: RD + 3, 9: RD + 3}
    for hb in range(5):
        a = DT + 16 * (hb >> 1) + 8 * (hb & 1)
        for i in range(8):
            Q = 2 * hb + (i >> 2)
            g.one(f"v_mul_f32 v{a+i}, v{a+i}, v{sel[Q]}")
        for p in range(4): g.one(f"v_cvt_pk_bf16_f32 v{a+p}, v{a+2*p}, v{a+2*p+1}")
        g.one(f"buffer_store_dwordx4 v[{a}:{a+3}], v{V_OH}, s[{S_WS}:{S_WS+3}], s{S_O+hb} offen{ST_FLAGS}", tag="ost")
    return head_groups, g.G

def o_block_B(st, L, regs, preloaded):
    h, b = o_groups_B(L, regs, preloaded)
    flush(st, h); flush(st, b)

V_OH = TMP + 38

def o_epilogue_B(st, L):
    q_epilogue_B(st, L)
    stamp(st, 4)
    st(f"v_mov_b32 v{V_OH}, v{V_H}")
    o_block_B(st, L, (X + 128, X + 48, 4, X, 4, X + 80, X + 140), "kvp")

def w2c_target(): return 16 if FMT_MODE == "B8" else 32
def fmt_nf(): return 8 if FMT_MODE == "B8" else 4
def fmt_here(typ): return typ == "B" or FMT_MODE == "AB4"

def fmt_setup(st, L):
    NF = fmt_nf(); per = 40 // NF; ntiles = 74 * per
    if FMT_MODE == "B8":
        st("s_sub_u32 s40, s2, 128")
        st("s_lshl_b32 s40, s40, 2")
    else:
        st("s_lshl_b32 s40, s2, 2")
    st(f"s_add_u32 s40, s40, s{S_WAVE}")
    st("s_mul_i32 s98, s40, 52429")
    st(f"s_lshr_b32 s98, s98, {18 if per == 5 else 19}")
    st(f"s_mul_i32 s41, s98, {per}")
    st("s_sub_u32 s99, s40, s41")
    st("s_lshl_b32 s45, s98, 5")
    st("s_add_u32 s46, s45, 16")
    st(f"s_mov_b32 s{S_FMT}, s{P_W2}")
    st(f"s_mov_b32 s{S_FMT+1}, s{P_W2+1}")
    st(f"s_mov_b32 s{S_FMT+2}, {W2_BYTES}")
    st(f"s_mov_b32 s{S_FMT+3}, 0x20000")
    st("s_cmp_lt_u32 s98, 54")
    st(f"s_cbranch_scc1 {L}_rows")
    st(f"s_mov_b32 s{S_FMT}, s{P_WO}")
    st(f"s_mov_b32 s{S_FMT+1}, s{P_WO+1}")
    st(f"s_mov_b32 s{S_FMT+2}, {WO_BYTES}")
    st("s_sub_u32 s42, s98, 54")
    st("s_mul_i32 s43, s42, 52429")
    st("s_lshr_b32 s43, s43, 18")
    st("s_mul_i32 s41, s43, 5")
    st("s_sub_u32 s42, s42, s41")
    st("s_mul_i32 s43, s43, 160")
    T0 = [0, 32, 64, 80, 112]; T1 = [16, 48, 144, 96, 128]
    st(f"s_mov_b32 s45, {T0[0]}")
    st(f"s_mov_b32 s46, {T1[0]}")
    for f in range(1, 5):
        st(f"s_cmp_eq_u32 s42, {f}")
        st(f"s_cselect_b32 s45, {T0[f]}, s45")
        st(f"s_cselect_b32 s46, {T1[f]}, s46")
    st("s_add_u32 s45, s45, s43")
    st("s_add_u32 s46, s46, s43")
    st.label(f"{L}_rows")
    st(f"s_mul_i32 s41, s99, {32*NF}")
    for u in range(2):
        st(f"s_mul_i32 s42, s{45+u}, 1280")
        st(f"s_add_u32 s{96+u}, s42, s41")
    st(f"s_cmp_ge_u32 s40, {ntiles}")
    st(f"s_cselect_b32 s{S_FMT+2}, 0, s{S_FMT+2}")
    st("s_cselect_b32 s100, 0x40000000, 0")

def fmt_dma_ops():
    g = Stream()
    v = V_FMT; NF = fmt_nf()
    rows = 32 // NF
    for i in range(NF):
        half, k = divmod(i, NF // 2)
        g(f"s_add_u32 s101, s{96 + half}, {rows * 1280 * k}")
        g(f"s_add_u32 m0, s{S_FTM}, {1024*i}")
        g(f"buffer_load_dwordx4 v{v}, s[{S_FMT}:{S_FMT+3}], s101 offen lds", tag="ft")
    return g.ops

def fmt_addr(st):
    v = V_FMT; l = V_LANE; a = TMP + 34; NF = fmt_nf()
    sh = 4 if NF == 8 else 3
    st(f"v_lshrrev_b32 v{v}, {sh}, v{l}")
    st(f"v_mul_u32_u24 v{v}, 1280, v{v}")
    st(f"v_and_b32 v{a}, {(1 << sh) - 1}, v{l}")
    st(f"v_lshl_add_u32 v{v}, v{a}, 4, v{v}")
    st(f"s_lshl_b32 s{S_FTM}, s{S_WAVE}, {13 if NF == 8 else 12}")
    st(f"s_add_u32 s{S_FTM}, s{S_FTM}, {FT}")
    st(f"v_lshrrev_b32 v{a}, 4, v{l}")
    st(f"v_lshrrev_b32 v{v+1}, 1, v{a}")
    st(f"v_and_b32 v{a}, 1, v{a}")
    st(f"v_lshlrev_b32 v{v+1}, 4, v{v+1}")
    st(f"v_lshl_add_u32 v{v+1}, v{a}, 2, v{v+1}")
    st(f"v_bfe_u32 v{a}, v{l}, 2, 2")
    st(f"v_add_u32 v{v+1}, v{v+1}, v{a}")
    st(f"v_lshlrev_b32 v{v+1}, {8 if NF == 8 else 7}, v{v+1}")
    st(f"v_and_b32 v{a}, 3, v{l}")
    st(f"v_lshl_add_u32 v{v+1}, v{a}, 3, v{v+1}")
    st(f"v_add_u32 v{v+1}, s{S_FTM}, v{v+1}")
    st(f"v_lshlrev_b32 v{v+2}, 4, v{l}")

def fmt_finish_groups():
    v = V_FMT; D0 = TMP + 8; NF = fmt_nf()
    pitch = 32 * NF
    halves = []
    for hf in range(NF // 4):
        G = []; ST = []
        for jj in range(4):
            j = 4 * hf + jj
            s = Stream()
            if j == 0: s.wait(vm="ft")
            s(f"ds_read_b64_tr_b16 v[{D0+4*jj}:{D0+4*jj+1}], v{v+1} offset:{32*j}", tag=f"fr{j}")
            s(f"ds_read_b64_tr_b16 v[{D0+4*jj+2}:{D0+4*jj+3}], v{v+1} offset:{32*j+8*pitch}", tag=f"fr{j}")
            G.append(s.ops)
            s = Stream()
            s(f"s_mul_i32 s43, s99, {NF}")
            s(f"s_add_u32 s43, s43, {j}")
            s("s_mul_i32 s47, s43, 52429")
            s("s_lshr_b32 s47, s47, 18")
            s("s_mul_i32 s101, s47, 5")
            s("s_sub_u32 s43, s43, s101")
            s(f"s_mul_i32 s47, s47, {NKB}")
            s("s_add_u32 s47, s47, s98")
            s("s_mul_i32 s47, s47, 5")
            s("s_add_u32 s47, s47, s43")
            s("s_lshl_b32 s47, s47, 10")
            s("s_add_u32 s47, s47, s100")
            s(f"s_add_u32 s47, s47, {W2F_OFF}")
            s.wait(lg=f"fr{j}")
            s(f"buffer_store_dwordx4 v[{D0+4*jj}:{D0+4*jj+3}], v{v+2}, s[{S_WS}:{S_WS+3}], s47 offen{ST_FLAGS}", tag="fst")
            ST.append(s.ops)
        halves.append((G, ST))
    return halves

XREG0 = SLOT
def x_region(j):
    return XREG0 + 16384 * (j if j < 8 else j - 5)

def x_phase(st, L, hook):
    l = V_LANE
    vXa, vXb, vXR, SUM, SQ = TMP + 4, TMP + 5, TMP + 6, TMP + 14, TMP + 18
    def chunk_ops(j):
        g = Stream()
        for i in range(4):
            g(f"s_add_u32 s{S_T+1}, s{S_XB}, {8*i*1280 + 128*j}")
            g(f"s_add_u32 m0, s{S_XM}, {x_region(j) + 1024*i}")
            g(f"buffer_load_dwordx4 v{vXa + (i & 1)}, s[{S_X}:{S_X+3}], s{S_T+1} offen lds", tag=f"X{j}")
        return g.ops
    def chunk(j): st.ops.extend(chunk_ops(j))
    if TOUCH:
        st(f"s_and_b32 s40, s{S_G}, 3")
        st("s_lshr_b32 s41, s2, 7")
        st("s_lshl_b32 s41, s41, 2")
        st("s_add_u32 s40, s40, s41")
        st("s_mul_i32 s40, s40, 20480")
        st(f"s_mul_i32 s41, s{S_R}, 163840")
        st("s_add_u32 s40, s40, s41")
        st(f"v_lshlrev_b32 v{TMP+22}, 4, v0")
        for i in range(5):
            st(f"buffer_load_dwordx4 v[{TMP+24}:{TMP+27}], v{TMP+22}, s[{S_X}:{S_X+3}], s40 offen", tag="touch")
            if i < 4: st("s_add_u32 s40, s40, 4096")
    st(f"v_lshrrev_b32 v{TMP}, 3, v{l}")
    st(f"v_lshrrev_b32 v{TMP+1}, 4, v{l}")
    st(f"v_and_b32 v{TMP+2}, 7, v{l}")
    st(f"v_xor_b32 v{TMP+2}, v{TMP+2}, v{TMP+1}")
    st(f"v_mul_u32_u24 v{TMP}, 1280, v{TMP}")
    st(f"v_lshl_add_u32 v{vXa}, v{TMP+2}, 4, v{TMP}")
    st(f"v_xor_b32 v{TMP+2}, 4, v{TMP+2}")
    st(f"v_lshl_add_u32 v{vXb}, v{TMP+2}, 4, v{TMP}")
    for j in range(2): chunk(j)
    stamp(st, 1, "x")
    hook("setup")
    st(f"v_and_b32 v{TMP}, 31, v{l}")
    st(f"v_bfe_u32 v{TMP+1}, v{l}, 1, 3")
    st(f"v_lshrrev_b32 v{TMP+2}, 5, v{l}")
    st(f"v_lshlrev_b32 v{TMP}, 7, v{TMP}")
    st(f"v_add_u32 v{TMP}, s{S_XM}, v{TMP}")
    for tt in range(4):
        st(f"v_add_u32 v{TMP+3}, {2*tt}, v{TMP+2}")
        st(f"v_xor_b32 v{TMP+3}, v{TMP+3}, v{TMP+1}")
        st(f"v_lshl_add_u32 v{vXR+tt}, v{TMP+3}, 4, v{TMP}")
        st(f"v_add_u32 v{vXR+4+tt}, {XREG0}, v{vXR+tt}")
    for tt in range(4):
        st(f"v_add_u32 v{vXR+tt}, {XREG0 + 65536}, v{vXR+tt}")
    SUM, SQ = TMP + 14, TMP + 18
    for k in range(4):
        st(f"v_mov_b32 v{SUM+k}, 0")
        st(f"v_mov_b32 v{SQ+k}, 0")
    stamp(st, 2, "x")
    for j in range(2, 5): chunk(j)
    stamp(st, 3, "x")
    def stats(j, q):
        for i in range(16):
            if i % 2 == 0:
                while q:
                    op = q.pop(0); st.ops.append(op)
                    if op.kind == "vmem": break
            r = X + 16 * j + i
            if NOSTATS: continue
            st(f"v_dot2c_f32_bf16 v{SUM+(i&3)}, 0x3f803f80, v{r}")
            st(f"v_dot2c_f32_bf16 v{SQ+(i&3)}, v{r}, v{r}")
    def reads(j):
        off = x_region(j) - XREG0
        base = vXR + 4
        if off >= 65536: base = vXR; off -= 65536
        for tt in range(4):
            r = X + 16 * j + 4 * tt
            st(f"ds_read_b128 v[{r}:{r+3}], v{base+tt} offset:{off}", tag=f"xr{j}")
    q = []
    for j in range(10):
        st.wait(vm=f"X{j}")
        if j == 0: stamp(st, 4, "x")
        if j == 9: stamp(st, 5, "x")
        reads(j)
        if j > 0:
            st.wait(lg=f"xr{j-1}")
            if j + 4 <= 9: q += chunk_ops(j + 4)
            if GLATE and PFJ <= j < PFJ + 3: q += hook(("pf", j - PFJ))
            if j == 6:
                st("s_barrier")
                q += hook("g0")
            if j == 7 and not GLATE: q += hook("g12")
            stats(j - 1, q)
    st.ops.extend(q); q = []
    st.wait(lg="xr9")
    stats(9, hook("g1") if GLATE else [])
    st(f"v_add_f32 v{SUM}, v{SUM}, v{SUM+1}")
    st(f"v_add_f32 v{SUM+2}, v{SUM+2}, v{SUM+3}")
    st(f"v_add_f32 v{SQ}, v{SQ}, v{SQ+1}")
    st(f"v_add_f32 v{SQ+2}, v{SQ+2}, v{SQ+3}")
    st(f"v_add_f32 v{SUM}, v{SUM}, v{SUM+2}")
    st(f"v_add_f32 v{SQ}, v{SQ}, v{SQ+2}")
    st(f"v_mov_b32 v{SUM+1}, v{SUM}")
    st(f"v_mov_b32 v{SQ+1}, v{SQ}")
    st(f"v_permlane32_swap_b32 v{SUM}, v{SUM+1}")
    st(f"v_permlane32_swap_b32 v{SQ}, v{SQ+1}")
    st(f"v_add_f32 v{SUM}, v{SUM}, v{SUM+1}")
    st(f"v_add_f32 v{SQ}, v{SQ}, v{SQ+1}")
    st(f"v_mul_f32 v{SUM}, 0x3acccccd, v{SUM}")
    st(f"v_mul_f32 v{SQ}, 0x3acccccd, v{SQ}")
    st(f"v_fma_f32 v{SQ}, -v{SUM}, v{SUM}, v{SQ}")
    st(f"v_max_f32 v{SQ}, 0, v{SQ}")
    st(f"v_cvt_pk_bf16_f32 v{SUM}, v{SUM}, v{SQ}")
    st(f"v_and_b32 v{SQ}, 0xffff0000, v{SUM}")
    st(f"v_lshlrev_b32 v{SUM}, 16, v{SUM}")
    st(f"v_add_f32 v{SQ}, 0x3727c5ac, v{SQ}")
    st(f"v_cvt_pk_bf16_f32 v{SQ}, v{SQ}, v{SQ}")
    st(f"v_lshlrev_b32 v{SQ}, 16, v{SQ}")
    st(f"v_sqrt_f32 v{SQ}, v{SQ}")
    st(f"v_cvt_pk_bf16_f32 v{SQ}, v{SQ}, v{SQ}")
    st(f"v_lshlrev_b32 v{SQ}, 16, v{SQ}")
    st(f"v_rcp_f32 v{V_RS}, v{SQ}")
    st(f"v_mul_f32 v{V_C}, v{SUM}, v{V_RS}")
    st(f"v_sub_f32 v{V_C}, 0, v{V_C}")

def setup_common(st, L):
    st("s_cmp_ge_u32 s2, 256")
    st(f"s_cbranch_scc1 {L}_exit")
    stamp(st, 0)
    st("s_mov_b32 s3, 0")
    st(f"s_load_dwordx16 s[{KA}:{KA+15}], s[0:1], 0")
    st(f"s_load_dwordx2 s[{P_WS}:{P_WS+1}], s[0:1], {KA_WS}")
    st("v_lshrrev_b32 v1, 6, v0")
    st(f"v_and_b32 v{V_LANE}, 63, v0")
    st(f"v_readfirstlane_b32 s{S_WAVE}, v1")
    if CODEPF:
        st("s_getpc_b64 s[96:97]")
        st.label(f"{L}_pc")
        st("s_lshr_b32 s40, s2, 3")
        st("s_lshl_b32 s40, s40, 2")
        st(f"s_add_u32 s40, s40, s{S_WAVE}")
        st("s_and_b32 s40, s40, 127")
        st(f"s_mul_i32 s41, s40, {-(-65536 // CODE_SLICES)}")
        st("s_lshr_b32 s41, s41, 16")
        st(f"s_mul_i32 s41, s41, {CODE_SLICES}")
        st("s_sub_u32 s40, s40, s41")
        st("s_lshl_b32 s40, s40, 11")
        st(f"v_lshrrev_b32 v3, 2, v{V_LANE}")
        st("v_lshlrev_b32 v3, 7, v3")
        st("v_add_u32 v3, s40, v3")
        st(f"v_min_u32 v3, {L}_exit - {L}_pc, v3")
        st(f"global_load_dword v{TMP+39}, v3, s[96:97]", tag="codepf")
    st("s_and_b32 s40, s2, 7")
    st("s_lshr_b32 s41, s2, 3")
    st("s_lshr_b32 s42, s40, 1")
    st("s_lshl_b32 s42, s42, 2")
    st("s_and_b32 s43, s41, 3")
    st(f"s_add_u32 s{S_R}, s42, s43")
    st("s_and_b32 s42, s40, 1")
    st("s_lshl_b32 s42, s42, 2")
    st("s_bfe_u32 s43, s41, 0x20002")
    st(f"s_add_u32 s{S_G}, s42, s43")
    st(f"s_lshl_b32 s42, s{S_R}, 2")
    st(f"s_add_u32 s42, s42, s{S_WAVE}")
    st(f"s_mul_i32 s{S_XB}, s42, {32*1280}")
    st(f"s_mul_i32 s{S_H}, s42, {2*NKB*1024}")
    st(f"s_add_u32 s{S_H}, s{S_H}, {HF_OFF}")
    st(f"s_lshl_b32 s{S_XM}, s{S_WAVE}, 12")
    st(f"s_mul_i32 s{S_M1}, s{S_WAVE}, 5120")
    st(f"s_mul_i32 s{S_M2}, s{S_WAVE}, 3072")
    st(f"s_lshl_b32 s{S_KV}, s{S_G}, 13")
    st(f"s_add_u32 s{S_KV}, s{S_KV}, {KV_OFF}")
    st.waitall(vm=False)
    srd(st, S_X, P_X, X_BYTES)
    srd(st, S_WS, P_WS, WS_USED)

def setup_late(st, L):
    l = V_LANE
    srd(st, S_DBG, P_DBG, 256)
    st(f"s_mov_b32 s{S_EPS}, 0x{EPS6:x}")
    st(f"s_mov_b32 s{S_L2E}, 0x{LOG2E:x}")
    st(f"s_mov_b32 s{S_HALF}, 0")
    st(f"s_mov_b32 s{S_HALF+1}, -1")
    st(f"s_mov_b32 s{S_HALF+2}, 0x0000ffff")
    st(f"s_mov_b32 s{S_HALF+3}, 0x0000ffff")
    a, b, c = FR, FR + 1, FR + 2
    st(f"v_lshrrev_b32 v{a}, 5, v{l}")
    st(f"v_lshlrev_b32 v{a}, 3, v{a}")
    st(f"v_bfe_u32 v{b}, v{l}, 2, 2")
    st(f"v_add_u32 v{a}, v{a}, v{b}")
    st(f"v_bfe_u32 v{b}, v{l}, 4, 1")
    st(f"v_lshlrev_b32 v{b}, 5, v{b}")
    st(f"v_and_b32 v{c}, 3, v{l}")
    st(f"v_lshl_add_u32 v{b}, v{c}, 3, v{b}")
    st(f"v_mul_u32_u24 v{c}, 320, v{a}")
    st(f"v_add_u32 v{V_T1}, v{c}, v{b}")
    st(f"v_add_u32 v{V_T1+1}, {3*SLOT}, v{V_T1}")
    st(f"v_mul_u32_u24 v{c}, 192, v{a}")
    st(f"v_add_u32 v{V_T2}, v{c}, v{b}")
    st(f"v_add_u32 v{V_T2+1}, {3*SLOT}, v{V_T2}")
    st(f"v_bfe_u32 v{a}, v{l}, 4, 1")
    st(f"v_mul_u32_u24 v{a}, {NKB*1024}, v{a}")
    st(f"v_and_b32 v{b}, 15, v{l}")
    st(f"v_lshl_add_u32 v{a}, v{b}, 4, v{a}")
    st(f"v_lshrrev_b32 v{b}, 5, v{l}")
    st(f"v_lshl_add_u32 v{V_H}, v{b}, 8, v{a}")

def dma_tables(st, typ):
    l = V_LANE
    a, b, c, d = FR, FR + 1, FR + 2, FR + 3
    if typ == "A":
        st(f"s_mul_i32 s40, s{S_G}, 160")
        st("s_add_u32 s40, s40, 1280")
        st(f"s_lshl_b32 s41, s{S_G}, 7")
    else:
        st(f"s_mul_i32 s44, s{S_G}, 5")
        st("s_add_u32 s44, s44, 16")
        st(f"s_cmp_eq_u32 s{S_G}, 6")
        st("s_cselect_b32 s44, 45, s44")
        st(f"s_cmp_eq_u32 s{S_G}, 7")
        st("s_cselect_b32 s44, 49, s44")
        st("s_lshl_b32 s40, s44, 6")
        st(f"s_mul_i32 s41, s{S_G}, 160")
    for i in range(5):
        st(f"v_add_u32 v{a}, {64*i}, v{l}")
        st(f"v_mul_u32_u24 v{b}, 3277, v{a}")
        st(f"v_lshrrev_b32 v{b}, 16, v{b}")
        st(f"v_mul_u32_u24 v{c}, 20, v{b}")
        st(f"v_sub_u32 v{c}, v{a}, v{c}")
        st(f"v_mul_u32_u24 v{b}, {3840 if typ == 'A' else 3456}, v{b}")
        st(f"v_lshl_add_u32 v{b}, v{c}, 4, v{b}")
        if typ == "A":
            st(f"v_cmp_le_u32 vcc, 10, v{c}")
            st(f"v_add_u32 v{d}, 1120, v{b}")
            st(f"v_cndmask_b32 v{b}, v{b}, v{d}, vcc")
        st(f"v_add_u32 v{V_D1+i}, s40, v{b}")
    for i in range(3):
        st(f"v_add_u32 v{a}, {64*i}, v{l}")
        st(f"v_mul_u32_u24 v{b}, 5462, v{a}")
        st(f"v_lshrrev_b32 v{b}, 16, v{b}")
        st(f"v_mul_u32_u24 v{c}, 12, v{b}")
        st(f"v_sub_u32 v{c}, v{a}, v{c}")
        if typ == "A":
            st(f"v_and_b32 v{c}, 7, v{c}")
        else:
            st(f"v_subrev_u32 v{d}, 10, v{c}")
            st(f"v_cmp_gt_u32 vcc, 10, v{c}")
            st(f"v_cndmask_b32 v{c}, v{d}, v{c}, vcc")
        st(f"v_mul_u32_u24 v{b}, {3456 if typ == 'A' else 3840}, v{b}")
        st(f"v_lshl_add_u32 v{b}, v{c}, 4, v{b}")
        st(f"v_add_u32 v{V_D2+i}, s41, v{b}")

def prefetch_weights(st, typ):
    v = TMP + 22
    sq, s1 = (S_W1, S_W2) if typ == "A" else (S_W2, S_W1)
    st(f"v_lshlrev_b32 v{v}, 4, v0")
    if WPREF:
        st("s_mul_i32 s42, s2, 9600")
        st("s_mul_i32 s43, s2, 8640")
        for i in range(3):
            st(f"buffer_load_dwordx4 v[{TMP+24}:{TMP+27}], v{v}, s[{sq}:{sq+3}], s42 offen", tag="pf")
            st("s_add_u32 s42, s42, 3200")
            st(f"buffer_load_dwordx4 v[{TMP+28}:{TMP+31}], v{v}, s[{s1}:{s1+3}], s43 offen", tag="pf")
            st("s_add_u32 s43, s43, 2880")

def prefetch_w2_ops():
    g = Stream()
    v = TMP + 22
    g(f"s_mov_b32 s{S_PF}, s{P_W2}")
    g(f"s_mov_b32 s{S_PF+1}, s{P_W2+1}")
    g(f"s_mov_b32 s{S_PF+2}, {W2_BYTES}")
    g(f"s_mov_b32 s{S_PF+3}, 0x20000")
    g(f"v_lshlrev_b32 v{v}, 4, v0")
    g("s_mul_i32 s43, s2, 8640")
    for i in range(3):
        g(f"buffer_load_dwordx4 v[{TMP+24}:{TMP+27}], v{v}, s[{S_PF}:{S_PF+3}], s43 offen", tag="pf")
        g("s_add_u32 s43, s43, 2880")
    g(f"s_mov_b32 s{S_PF}, s{P_WO}")
    g(f"s_mov_b32 s{S_PF+1}, s{P_WO+1}")
    g(f"s_mov_b32 s{S_PF+2}, {WO_BYTES}")
    g("s_mul_i32 s43, s2, 3200")
    g(f"buffer_load_dwordx4 v[{TMP+24}:{TMP+27}], v{v}, s[{S_PF}:{S_PF+3}], s43 offen", tag="pf")
    return g.ops

DUMP_XN = False
FMT_MODE = "AB4"
CODEPF = True
CODE_SLICES = 36
OSIG = 3
HIDE_A = False
HIDE_B = True
KSTEP = 7
KBUDGET = 6
OBUDGET = 20
HB_SLOT = 252
HB_STAGE, HB_FILL_END, HB_PER = 18, 280, 3
PFJ = 1
NOSTATS = False
GLATE = False
FT_EVERY = 3
FT_T0 = 110
FMTX = ""
EARLY = True
S2D = 3
S2FLAGS = " sc1"
S2ROT = True
OSTEP = 1
W2PF = False
FMT_STAGE = 1
VME_1, VME_A2, VME_B2 = 4, 2, 4
SAMEW = False
FUSED = False
TOUCH = True
NOFMT = False
NONORM = False
WPREF = True
def dump_xn(st):
    st(f"v_lshlrev_b32 v{TMP}, 4, v{V_LANE}")
    st(f"s_lshl_b32 s40, s{S_R}, 2")
    st(f"s_add_u32 s40, s40, s{S_WAVE}")
    st("s_mul_i32 s40, s40, 40960")
    for t in range(40):
        st(f"buffer_store_dwordx4 v[{X+4*t}:{X+4*t+3}], v{TMP}, s[{S_WS}:{S_WS+3}], s40 offen")
        st("s_add_u32 s40, s40, 1024")

def s1_type(st, L, typ):
    l = V_LANE
    P = Passes(st, typ)
    def type_consts():
        if typ == "A":
            st(f"s_mul_i32 s40, s{S_WAVE}, 7168")
            st(f"s_add_u32 s40, s40, {KVP}")
            a, b = FR + 8, FR + 9
            st(f"v_and_b32 v{a}, 31, v{l}")
            st(f"v_lshrrev_b32 v{b}, 5, v{l}")
            st(f"v_lshlrev_b32 v{b}, 4, v{b}")
            st(f"v_add_u32 v{V_Z}, s40, v{b}")
            st(f"v_mul_u32_u24 v{a}, 80, v{a}")
            st(f"v_add_u32 v{a}, v{a}, v{V_Z}")
            st(f"v_subrev_u32 v{V_KVA}, 1280, v{a}")
            st(f"s_lshl_b32 s{S_T+8}, s{S_G}, 11")
            st(f"s_add_u32 s{S_T+8}, s{S_T+8}, s{S_H}")
        else:
            st("s_lshl_b32 s44, s44, 10")
            st(f"s_add_u32 s{S_T+8}, s44, s{S_H}")
            st(f"s_add_u32 s{S_T+9}, s{S_T+8}, 4096")
            st(f"s_lshr_b32 s40, s{S_G}, 1")
            st("s_mul_i32 s40, s40, 5120")
            st(f"s_add_u32 s40, s40, {54*1024}")
            st(f"s_add_u32 s40, s40, s{S_H}")
            st(f"s_bitcmp1_b32 s{S_G}, 0")
            ev = [0, 512, 1024, 1536, 2048]; od = [3072, 3584, 4096, 4608, 2560]
            for hb in range(5):
                st(f"s_mov_b32 s{S_O+hb}, {ev[hb]}")
                st(f"s_cmov_b32 s{S_O+hb}, {od[hb]}")
            for hb in range(5):
                st(f"s_add_u32 s{S_O+hb}, s{S_O+hb}, s40")
            a = FR + 8
            st(f"v_and_b32 v{a}, 31, v{l}")
            st(f"v_mul_u32_u24 v{a}, {KVP_PITCH}, v{a}")
            st(f"v_lshrrev_b32 v{a+1}, 5, v{l}")
            st(f"v_lshl_add_u32 v{a}, v{a+1}, 4, v{a}")
            st(f"v_add_u32 v{V_KVA}, {KVP}, v{a}")
            DUMMY = KVP + 96 * KVP_PITCH
            r = [a + k for k in range(8)]
            for i in range(2):
                st(f"v_add_u32 v{r[0]}, {256*i}, v0")
                st(f"v_mul_u32_u24 v{r[1]}, 625, v{r[0]}")
                st(f"v_lshrrev_b32 v{r[1]}, 16, v{r[1]}")
                st(f"v_mul_u32_u24 v{r[2]}, 105, v{r[1]}")
                st(f"v_sub_u32 v{r[2]}, v{r[0]}, v{r[2]}")
                st(f"v_mul_u32_u24 v{r[3]}, 13108, v{r[2]}")
                st(f"v_lshrrev_b32 v{r[3]}, 16, v{r[3]}")
                st(f"v_mul_u32_u24 v{r[4]}, 5, v{r[3]}")
                st(f"v_sub_u32 v{r[4]}, v{r[2]}, v{r[4]}")
                st(f"v_mul_u32_u24 v{r[5]}, 5, v{r[1]}")
                st(f"v_add_u32 v{r[4]}, v{r[4]}, v{r[5]}")
                st(f"v_lshlrev_b32 v{r[4]}, 4, v{r[4]}")
                st(f"v_mul_u32_u24 v{r[5]}, 20, v{r[1]}")
                st(f"v_add_u32 v{r[5]}, v{r[5]}, v{r[3]}")
                st(f"v_add_u32 v{r[6]}, 80, v{r[1]}")
                st(f"v_cmp_eq_u32 vcc, 20, v{r[3]}")
                st(f"v_cndmask_b32 v{r[5]}, v{r[5]}, v{r[6]}, vcc")
                st(f"v_mul_u32_u24 v{r[5]}, {KVP_PITCH}, v{r[5]}")
                st(f"v_add_u32 v{r[5]}, v{r[5]}, v{r[4]}")
                st(f"v_add_u32 v{r[5]}, {KVP}, v{r[5]}")
                st(f"v_add_u32 v{r[6]}, {4*KVP_PITCH}, v{r[5]}")
                st(f"v_mov_b32 v{r[7]}, {DUMMY}")
                st(f"v_cndmask_b32 v{r[6]}, v{r[7]}, v{r[6]}, vcc")
                st(f"v_cmp_gt_u32 vcc, 420, v{r[0]}")
                st(f"v_cndmask_b32 v{V_W+2*i}, v{r[7]}, v{r[5]}, vcc")
                st(f"v_cndmask_b32 v{V_W+2*i+1}, v{r[7]}, v{r[6]}, vcc")
    def hook(what):
        if what == "setup":
            setup_late(st, L)
            if typ == "A":
                srd(st, S_W1, P_WQKV, WQKV_BYTES); srd(st, S_W2, P_W1, W1_BYTES)
                st(f"s_mul_i32 s{S_K1}, s{S_WAVE}, {16*3840}")
                st(f"s_mul_i32 s{S_K2}, s{S_WAVE}, {16*3456}")
            else:
                srd(st, S_W1, P_W1, W1_BYTES); srd(st, S_W2, P_WQKV, WQKV_BYTES)
                st(f"s_mul_i32 s{S_K1}, s{S_WAVE}, {16*3456}")
                st(f"s_mul_i32 s{S_K2}, s{S_WAVE}, {16*3840}")
            if fmt_here(typ):
                fmt_setup(st, L + typ + "_fmt")
                fmt_addr(st)
            dma_tables(st, typ)
            type_consts()
        elif what == "g0":
            return P.group(0).ops
        elif isinstance(what, tuple) and what[0] == "pf":
            if not WPREF: return []
            g = Stream(); prefetch_weights(g, typ)
            parts = []; cur = []
            for op in g.ops:
                cur.append(op)
                if op.kind == "vmem": parts.append(cur); cur = []
            k = what[1]
            return parts[2 * k] + parts[2 * k + 1]
        elif what == "g1":
            return P.group(1).ops
        elif what == "g12":
            ops = P.group(1).ops + P.group(2).ops
            g = Stream(); prefetch_weights(g, typ); ops += g.ops
            return ops
    if typ == "A":
        st(f"s_cmp_lg_u32 s{S_R}, 0")
        st(f"s_cbranch_scc1 {L}_nozero")
        for i in range(4): st(f"v_mov_b32 v{FR+i}, 0")
        st(f"v_lshlrev_b32 v{FR+4}, 4, v0")
        st(f"s_add_u32 s40, s{S_KV}, 4096")
        st(f"s_lshl_b32 s41, s{S_G}, 12")
        st(f"s_add_u32 s41, s41, {FL_OFF}")
        st(f"buffer_store_dwordx4 v[{FR}:{FR+3}], v{FR+4}, s[{S_WS}:{S_WS+3}], s{S_KV} offen sc0 sc1", note="cond")
        st(f"buffer_store_dwordx4 v[{FR}:{FR+3}], v{FR+4}, s[{S_WS}:{S_WS+3}], s40 offen sc0 sc1", note="cond")
        st(f"buffer_store_dwordx4 v[{FR}:{FR+3}], v{FR+4}, s[{S_WS}:{S_WS+3}], s41 offen sc0 sc1", note="cond")
        st("s_nop 1")
        st.label(f"{L}_nozero")
    x_phase(st, L, hook)
    stamp(st, 1)
    stamp(st, 6, "x")
    if typ == "A":
        def zsig(st):
            st(f"s_cmp_lg_u32 s{S_R}, 0")
            st(f"s_cbranch_scc1 {L}_nozsig")
            signal(st, L, "z", [f"s_mov_b32 s{S_T}, 0"], S_DBG, lanes=4, lane_stride=64)
            st.label(f"{L}_nozsig")
        P.after_barrier[0] = zsig
    flush(st, norm_groups(0)); flush(st, norm_groups(1))
    P.start(0)
    stamp(st, 2)
    fill = []
    for t in range(2, 40): fill += ([] if NONORM else norm_groups(t))

    if W2PF:
        prev0 = P.after_barrier.get(0)
        def hook0(st_):
            if prev0: prev0(st_)
            P.extra.extend(prefetch_w2_ops())
        P.after_barrier[0] = hook0
    if fmt_here(typ) and not NOFMT:
        halves = fmt_finish_groups()
        P.after_barrier[FMT_STAGE] = lambda st_: P.extra.extend(fmt_dma_ops())
        t0 = FT_T0
        for k, (G, ST) in enumerate(halves):
            P.inject[t0 + 26 * k] = G
            P.inject[t0 + 26 * k + 6] = ST
    P.after_barrier[4] = lambda st_: preload(st_, L, "initp", INIT_SPEC, S_DBG)
    P.after_barrier[6] = lambda st_: poll(st_, L, "init", INIT_SPEC, 8, S_DBG, preloaded="initp")
    if FUSED and fmt_here(typ):
        def fst_wait(st_):
            assert NOFMT or (not P.injq and not P.inject), "format stores not issued"
            st_.wait(vm="fst")
        P.before_barrier[FMT_STAGE + 8] = fst_wait
        P.after_barrier[FMT_STAGE + 8] = lambda st_: signal(st_, L, "w2", [f"s_and_b32 s{S_T}, s2, 7", f"s_lshl_b32 s{S_T}, s{S_T}, 7", f"s_add_u32 s{S_T}, s{S_T}, {FL_OFF + 128*FL_W2}"], S_WS)
    if typ == "A":
        if FUSED and HIDE_A:
            rest = P.run(0, 200, fill, per_slot=4, vm_takes_slot=False)
            assert not rest
            stamp(st, 3)
            stamp(st, 6, "p1")
            P.run(200, 268)
            P.drain_groups()
            preload(st, L, "startp", START_SPEC, S_WS)
            P.run(268, 280)
            stamp(st, 6)
            for b in range(2):
                flush(st, relu_pack_store(ACC2 + 16 * b, TMP + 8 + 8 * b, TMP, S_T + 8, 1024 * b))
            s2_part(st, L, "A")
            return
        rest = P.run(0, 200, fill, per_slot=4, lookahead_to=200, vm_takes_slot=False)
        assert not rest
        stamp(st, 3)
        stamp(st, 6, "p1")
        if DUMP_XN: dump_xn(st)
        kv_epilogue_A(st, L + "_A")
        if FUSED and EARLY: preload(st, L, "w2cp", W2C_SPEC, S_WS)
        stamp(st, 5)
        S = None
        if FUSED and EARLY:
            S = s2_make(L, "A")
            s2_ids(st, "A")
            S.setup(st)
            g = Stream()
            for i in range(S2D): S.addr(g, i, V_EA + i, V_EB + i)
            st.extend(g)
            poll(st, L, "w2c", W2C_SPEC, w2c_target(), S_WS, preloaded="w2cp")
            eb = Stream()
            for i in range(S2D): S.loadsB(eb, i, V_EB + i)
            P.after_barrier[10] = lambda st_: P.extra.extend(eb.ops)
        P.start(200)
        P.run(200, 240)
        P.drain_groups(keep_extra=True)
        st.wait(vm="kvat")
        st("s_barrier")
        signal(st, L, "kv", flag_off(FL_KVC, S_G), S_WS)
        if FUSED and EARLY:
            P.run(240, HB_SLOT - 12)
            P.drain_groups(keep_extra=True)
            preload(st, L, "hbp", flag_spec(FL_HB, S_R), S_WS)
            P.run(HB_SLOT - 12, HB_SLOT)
            P.drain_groups(keep_extra=True)
            assert not P.extra or HB_SLOT < 280
            if HB_SLOT == 280: P.drain_groups()
            poll(st, L, "hb", flag_spec(FL_HB, S_R), 8, S_WS, preloaded="hbp")
            st("s_barrier")
            ea = Stream()
            for i in range(S2D): S.loadsA(ea, i, V_EA + i)
            P.extra.extend(ea.ops)
            P.dense = True
            P.run(HB_SLOT, 280)
            P.drain_groups()
        else:
            P.run(240, 280)
        stamp(st, 6)
        if FUSED and not EARLY: preload(st, L, "startp", START_SPEC, S_WS)
        for b in range(2):
            flush(st, relu_pack_store(ACC2 + 16 * b, TMP + 8 + 8 * b, TMP, S_T + 8, 1024 * b))
        if FUSED: s2_part(st, L, "A", S, S2D if EARLY else 0)
    else:
        if FUSED:
            def hb_wait(st_):
                n = sum(1 for o in st_.ops[b_start:] if o.tag == "hst")
                assert n == 10, n
                st_.wait(vm="hst")
            b_start = len(st.ops)
            P.before_barrier[HB_STAGE] = hb_wait
            P.after_barrier[HB_STAGE] = lambda st_: signal(st_, L, "hb", flag_off(FL_HB, S_R), S_WS)
        rest = P.run(0, 200, fill, per_slot=4, vm_takes_slot=False)
        assert not rest
        stamp(st, 3)
        stamp(st, 6, "p1")
        fill = []
        for b in range(5):
            fill += relu_pack_store(ACC1 + 16 * b, TMP + 8 + 8 * (b & 1), TMP, S_T + 8 if b < 4 else S_T + 9, 1024 * (b & 3))
        P.run(200, 204, per_slot=0)
        rest = P.run(204, HB_FILL_END, fill, per_slot=HB_PER)
        flush(st, rest)
        P.run(HB_FILL_END, 300)
        P.drain_groups()
        if not FUSED: preload(st, L, "kvp", flag_spec(FL_KVC, S_G), S_WS, regs=KVREGS)
        P.run(300, 320)
        if FUSED:
            preload(st, L, "startp", START_SPEC, S_WS)
            if not HIDE_B: q_epilogue_B(st, L + "_B")
            st(f"v_mov_b32 v{V_OH}, v{V_H}")
            stamp(st, 4)
            s2_part(st, L, "B")
        else:
            o_epilogue_B(st, L + "_B")

S_RHO, S_ROT, S2_SB, S2_SQ = 98, 99, 96, 100
V_EA, V_EB = TMP + 30, TMP + 33

def s2_make(L, typ):
    segs = [(16, 10, True), (0, 4, False), (54, 5, False)]
    def own_signal(st_):
        if typ == "B": assert sum(1 for o in st_.ops if o.tag == "ost") == 5, "o stores not issued before their signal"
        st_.wait(vm="hst" if typ == "A" else "ost")
        st_("s_barrier")
        signal(st_, L, "own", flag_off(FL_HA if typ == "A" else FL_OB, S_R), S_WS)
    def check(name, line, pre):
        def f(st_):
            poll(st_, L, name, flag_spec(line, S_R), 8, S_WS, preloaded=pre)
            st_("s_barrier")
        return f
    def start_check(st_):
        poll(st_, L, "start", START_SPEC, (w2c_target(), 8), S_WS, preloaded="startp")
        st_("s_barrier")
        stamp(st_, 2, "s2")
    def seq(*fs):
        def f(st_):
            for x in fs: x(st_)
        return f
    pre_ha = lambda st_: preload(st_, L, "hap", flag_spec(FL_HA, S_R), S_WS)
    pre_ob = lambda st_: preload(st_, L, "obp", flag_spec(FL_OB, S_R), S_WS)
    hooks = {}
    def add(step, kind, fn):
        h = hooks.setdefault(step, {})
        h[kind] = seq(h[kind], fn) if kind in h else fn
    add(10, "pre", check("ha", FL_HA, "hap"))
    add(14 - S2D - 2, "post", pre_ob)
    add(14, "pre", check("ob", FL_OB, "obp"))
    fill = {}
    if (HIDE_A if typ == "A" else HIDE_B):
        add(0, "pre", start_check)
        if typ == "A":
            add(0, "post", own_signal)
            fill[0] = kv_groups_A(L)
            def kv_signal(st_):
                assert sum(1 for o in st_.ops if o.tag == "kvat") == 7
                st_.wait(vm="kvat")
                st_("s_barrier")
                signal(st_, L, "kv", flag_off(FL_KVC, S_G), S_WS)
            add(KSTEP, "post", kv_signal)
            add(10 - S2D - 2, "post", pre_ha)
        else:
            fill[0] = q_groups_B()
            h, b = o_groups_B(L, (TMP + 20, FR, 2, FR + 16, 2, 208, TMP + 32), "kvp")
            add(OSTEP - 1, "post", lambda st_: preload(st_, L, "kvp", flag_spec(FL_KVC, S_G), S_WS, regs=KVREGS))
            add(OSTEP, "post", lambda st_: flush(st_, h))
            fill[OSTEP + 1] = b
            add(10 - S2D - 2, "post", pre_ha)
            assert OSTEP + OSIG < 14 - S2D, "the o signal must precede the o check"
            add(OSTEP + OSIG, "post", own_signal)
    elif typ == "A":
        if EARLY: add(0, "post", own_signal)
        else:
            add(0, "pre", start_check)
            hooks[("p", min(2, S2D - 1))] = own_signal
        add(10 - S2D - 2, "post", pre_ha)
    else:
        add(0, "pre", start_check)
        add(max(OSTEP - 2, 0), "post", lambda st_: preload(st_, L, "kvp", flag_spec(FL_KVC, S_G), S_WS, regs=KVREGS))
        add(OSTEP, "post", lambda st_: o_block_B(st_, L, (TMP + 20, FR, 2, FR + 16, 2, 208, TMP + 32), "kvp"))
        add(max(OSTEP, 10 - S2D - 2), "post", pre_ha)
        add(OSTEP + 2, "post", own_signal)
    R = dict(ws=S_WS, x=S_X, out=S_FMT, c=S_G, rho=S_RHO, w=S_WAVE, lane=V_LANE, vA=3, vB=4, vL=5, vX=8, vR=10,
             acc=128, aring=256 - 36 * (S2D + 1), slot0=1, sA=24, sB=S2_SB, sT=S_T + 4, res=96, tmp=112,
             stamp0=3, sgroup="s2", rot=S_ROT, sQ=S2_SQ)
    S = s2c.S2(R, segs, D=S2D, ldflags=S2FLAGS, hooks=hooks)
    S.fill = fill
    return S

def s2_ids(st, typ):
    st(f"s_lshl_b32 s{S_RHO}, s{S_R}, 1")
    if typ == "B": st(f"s_add_u32 s{S_RHO}, s{S_RHO}, 1")
    st(f"s_and_b32 s{S_ROT}, s{S_RHO}, 7")
    st(f"s_and_b32 s{S_T}, s{S_G}, 3")
    st(f"s_lshl_b32 s{S_T}, s{S_T}, 1")
    st(f"s_add_u32 s{S_ROT}, s{S_ROT}, s{S_T}")
    if not S2ROT: st(f"s_mov_b32 s{S_ROT}, 0")

def s2_part(st, L, typ, S=None, issued=0):
    stamp(st, 1, "s2")
    srd(st, S_FMT, P_OUT, OUT_BYTES)
    flag_regs(106, 108)
    if S is None:
        S = s2_make(L, typ)
        s2_ids(st, typ)
        S.setup(st)
    S.run(st, issued, S.fill, KBUDGET if typ == "A" else OBUDGET)
    flag_regs(TMP + 28, TMP + 4)

def gen_k1e(name="proj_kernel"):
    st = Stream()
    L = name
    setup_common(st, L)
    st("s_cmp_ge_u32 s2, 128")
    st(f"s_cbranch_scc1 {L}_B")
    s1_type(st, L + "_a", "A")
    st(f"s_branch {L}_end")
    st.label(f"{L}_B")
    s1_type(st, L + "_b", "B")
    st.label(f"{L}_end")
    stamp_flush(st, 0, S_WS, S_WAVE, 7)
    st.label(f"{L}_exit")
    st("s_endpgm")
    txt, npad = kernel_text(name, st)
    print("k1e: hazard pad states", npad)
    return txt, descriptor(name, 512, 256), dict(grid=256, block=256, lds=K1_LDS)
```

```python
import sys, os
import common
if len(sys.argv) > 2 and sys.argv[2] == 'prof':
    common.PROF = True
    if len(sys.argv) > 3: common.STAMP_SET = sys.argv[3]
if os.environ.get('HWID'): common.HWID = True
from build import *
import k1e
k1e.FUSED = True
k1e.ST_FLAGS = " sc1"
if os.environ.get('WPREF') == '0': k1e.WPREF = False
if os.environ.get('TOUCH') == '0': k1e.TOUCH = False
if os.environ.get('FMT_STAGE'): k1e.FMT_STAGE = int(os.environ['FMT_STAGE'])
if os.environ.get('OSTEP'): k1e.OSTEP = int(os.environ['OSTEP'])
if os.environ.get('S2D'): k1e.S2D = int(os.environ['S2D'])
if 'S2FLAGS' in os.environ: k1e.S2FLAGS = os.environ['S2FLAGS']
if os.environ.get('S2ROT') == '0': k1e.S2ROT = False
if os.environ.get('EARLY') == '0': k1e.EARLY = False
if os.environ.get('FMTX'): k1e.FMTX = os.environ['FMTX']
if os.environ.get('FT'): k1e.FT_EVERY, k1e.FT_T0, k1e.FMT_STAGE = [int(x) for x in os.environ['FT'].split(',')]
if os.environ.get('PFJ'): k1e.PFJ = int(os.environ['PFJ'])
if os.environ.get('HB'): k1e.HB_SLOT, k1e.HB_STAGE, k1e.HB_FILL_END, k1e.HB_PER = [int(x) for x in os.environ['HB'].split(',')]
if os.environ.get('HIDE_A'): k1e.HIDE_A = os.environ['HIDE_A'] == '1'
if os.environ.get('HIDE_B'): k1e.HIDE_B = os.environ['HIDE_B'] == '1'
for k in ('KSTEP', 'KBUDGET', 'OBUDGET', 'OSIG'):
    if os.environ.get(k): setattr(k1e, k, int(os.environ[k]))
if os.environ.get('CODEPF') == '0': k1e.CODEPF = False
if os.environ.get('FMT_MODE'): k1e.FMT_MODE = os.environ['FMT_MODE']
for k in ('NOSTATS', 'GLATE', 'NOFMT', 'NONORM', 'SAMEW', 'W2PF'):
    if os.environ.get(k) == '1': setattr(k1e, k, True)
if os.environ.get('VME'): k1e.VME_1, k1e.VME_A2, k1e.VME_B2 = [int(x) for x in os.environ['VME'].split(',')]
name = common.NAME + "_kernel"
t, d, l = k1e.gen_k1e(name)
hdr = open("cdna_kernels/" + common.NAME + ".s.ref").read().split("; Override launch")[0]
out = hdr + f"; @launch grid=({l['grid']},1,1) block=({l['block']},1,1) lds={l['lds']}\n"
out += '.amdgcn_target "amdgcn-amd-amdhsa--gfx950"\n.text\n' + t + '.section .rodata,"a"\n' + d
open(sys.argv[1], "w").write(out)
```
